```python
import torch

def _softmax(x, axis=-1):
    return torch.softmax(x, dim=axis)
def _gelu(x):
    return torch.nn.functional.gelu(x, approximate="tanh")
def _silu(x):
    return torch.nn.functional.silu(x)
def _sigmoid(x):
    return torch.sigmoid(x)
def _layernorm(x, axis=-1, eps=1e-5):
    m = x.mean(dim=axis, keepdim=True)
    v = x.var(dim=axis, keepdim=True, unbiased=False)
    return (x - m) / torch.sqrt(v + eps)
def _scatter_add(tgt, idx, src, axis=0):
    return tgt.clone().index_add_(axis, idx, src)
def _segment_sum(src, seg, n):
    out = torch.zeros((n,) + src.shape[1:], dtype=src.dtype)
    return out.index_add_(0, seg, src)
def _pad(x, pw):
    flat = tuple(v for pair in reversed(pw) for v in pair)
    return torch.nn.functional.pad(x, flat)

kernel_name = 'parallel_sum__gqa_block_cached__mixer_token_mlp__decode'

def setup_inputs():

    _w = (lambda a: (lambda t: t.to(torch.bfloat16) if t.is_floating_point() else t)(torch.as_tensor(a)))
    def _A_setup():
        B, Sq, D = 1, 1, 512
        Hq, Hkv, Sk, Dh = 32, 8, 32768, 128
        assert Hq % Hkv == 0, (Hq, Hkv)
        return {
            "x": _w((lambda *s: torch.randn(*s, dtype=torch.bfloat16) * 0.05)(B, Sq, D)),
            "k_cache": _w((lambda *s: torch.randn(*s, dtype=torch.bfloat16) * 3.2)(B, Hkv, Sk, Dh)),
            "v_cache": _w((lambda *s: torch.randn(*s, dtype=torch.bfloat16) * 1.6)(B, Hkv, Sk, Dh)),
            "wq": _w((lambda *s: torch.randn(*s, dtype=torch.bfloat16) * 3.2)(D, Hq * Dh) * (D ** -0.5)),
            "wo": _w((lambda *s: torch.randn(*s, dtype=torch.bfloat16) * 1.6)(Hq * Dh, D) * ((Hq * Dh) ** -0.5)),
        }
    _A_in = _A_setup()

    def _B_setup():
        B, S, D, F = 1, 1, 512, 1792
        return {
            "x": _w((lambda *s: torch.randn(*s, dtype=torch.bfloat16) * 0.05)(B, S, D)),
            "w1": _w((lambda *s: torch.randn(*s, dtype=torch.bfloat16) * 1.6)(S, F) * (S ** -0.5)),
            "b1": _w((lambda *s: torch.randn(*s, dtype=torch.bfloat16) * 1.6)(F) * 0.02),
            "w2": _w((lambda *s: torch.randn(*s, dtype=torch.bfloat16) * 1.6)(F, S) * (F ** -0.5)),
            "b2": _w((lambda *s: torch.randn(*s, dtype=torch.bfloat16) * 1.6)(S) * 0.02),
        }
    _B_in = _B_setup()

    return {
        "A_x": _A_in["x"],
        "A_k_cache": _A_in["k_cache"],
        "A_v_cache": _A_in["v_cache"],
        "A_wq": _A_in["wq"],
        "A_wo": _A_in["wo"],
        "B_x": _B_in["x"],
        "B_w1": _B_in["w1"],
        "B_b1": _B_in["b1"],
        "B_w2": _B_in["w2"],
        "B_b2": _B_in["b2"],
    }

def reference(A_x, A_k_cache, A_v_cache, A_wq, A_wo, B_x, B_w1, B_b1, B_w2, B_b2):
    def _A_ref(x, k_cache, v_cache, wq, wo):
        B, Sq, D = x.shape
        Hq, Dh = 32, 128
        Hkv = k_cache.shape[1]
        rep = Hq // Hkv
        q = (lambda x, *d: x.permute(*d))((x @ wq).reshape(B, Sq, Hq, Dh), 0, 2, 1, 3)
        k = (lambda x, n, axis: torch.repeat_interleave(x, n, dim=axis))(k_cache, rep, axis=1)
        v = (lambda x, n, axis: torch.repeat_interleave(x, n, dim=axis))(v_cache, rep, axis=1)
        scores = torch.einsum("bhqd,bhkd->bhqk", q, k) * (Dh ** -0.5)
        p = _softmax(scores, axis=-1)
        o = torch.einsum("bhqk,bhkd->bhqd", p, v)
        return (lambda x, *d: x.permute(*d))(o, 0, 2, 1, 3).reshape(B, Sq, Hq * Dh) @ wo

    def _B_ref(x, w1, b1, w2, b2):
        B, S, D = x.shape
        h = _layernorm(x, axis=-1)
        u = torch.einsum("bsd,sf->bdf", h, w1) + b1
        u = _gelu(u)
        y = torch.einsum("bdf,fs->bds", u, w2) + b2
        return (lambda x, *d: x.permute(*d))(y, 0, 2, 1)

    x = A_x
    xn = _layernorm(x, axis=-1)
    return x + _A_ref(xn, A_k_cache, A_v_cache, A_wq, A_wo) + _B_ref(xn, B_w1, B_b1, B_w2, B_b2)
```

```python
import re

TRANS = ("v_exp_f32", "v_log_f32", "v_rcp_f32", "v_rsq_f32", "v_sqrt_f32", "v_sin_f32", "v_cos_f32")

def _regs(tok):
    tok = tok.strip()
    tok = tok.lstrip("-").strip("|")
    m = re.fullmatch(r"([vsa])\[(\d+):(\d+)\]", tok)
    if m:
        return {f"{m.group(1)}{i}" for i in range(int(m.group(2)), int(m.group(3)) + 1)}
    m = re.fullmatch(r"([vsa])(\d+)", tok)
    if m:
        return {tok}
    if tok in ("vcc", "vcc_lo", "vcc_hi"):
        return {"vcc"}
    if tok in ("exec", "exec_lo", "exec_hi"):
        return {"exec"}
    if tok == "m0":
        return {"m0"}
    return set()

class Ins:
    def __init__(self, text):
        self.text = text
        t = text.split(";")[0].strip()
        parts = t.split(None, 1)
        self.op = parts[0]
        rest = parts[1] if len(parts) > 1 else ""
        ops = []; depth = 0; cur = ""
        for ch in rest:
            if ch == "[": depth += 1
            if ch == "]": depth -= 1
            if ch == "," and depth == 0:
                ops.append(cur.strip()); cur = ""
            else:
                cur += ch
        if cur.strip(): ops.append(cur.strip())
        mods = ""
        if ops:
            sp = ops[-1].split(None, 1)
            ops[-1] = sp[0]
            mods = sp[1] if len(sp) > 1 else ""
        self.ops = ops; self.mods = mods
        op = self.op
        self.is_mfma = op.startswith("v_mfma")
        self.is_valu = op.startswith("v_") and not self.is_mfma
        self.is_dot = op.startswith("v_dot")
        self.is_trans = any(op.startswith(x) for x in TRANS)
        self.is_dpp = self.is_valu and bool(re.search(r"quad_perm|row_|wave_", mods))
        self.is_perml = op.startswith("v_permlane")
        self.is_rl = op.startswith("v_readlane") or op.startswith("v_readfirstlane")
        self.is_ds = op.startswith("ds_")
        self.is_vmem = op.startswith("buffer_") or op.startswith("global_")
        self.is_lds_dma = self.is_vmem and (" lds" in " " + mods or "load_lds" in op)
        self.is_salu = op.startswith("s_")
        self.slots = 1
        if op == "s_nop": self.slots = int(ops[0]) + 1
        R = [_regs(o) for o in ops]
        W = set(); Rd = set(); self.srcC = set(); self.srcAB = set(); self.sdata = set()
        if self.is_mfma:
            W = R[0]; self.srcAB = R[1] | R[2]; self.srcC = R[3]; Rd = self.srcAB | self.srcC
            self.passes = 2 if "4x4x4" in op else (4 if "16x16x32" in op else 8)
            self.dtok = ops[0]; self.ctok = ops[3]
        elif self.is_perml:
            W = R[0] | R[1]; Rd = W
        elif self.is_valu:
            W = R[0]; Rd = set().union(*R[1:]) if len(R) > 1 else set()
            if "_co_" in op:
                W = R[0] | R[1]; Rd = set().union(*R[2:])
            if op.startswith("v_dot2c") or op.startswith("v_fmac") or op.startswith("v_writelane") or self.is_dpp and False:
                Rd |= R[0]
            if self.is_dot:
                self.srcC = R[0] if op.startswith("v_dot2c") else R[3]
                self.srcAB = R[1] | R[2]
        elif self.is_ds:
            if op.startswith("ds_read"):
                W = R[0]; Rd = R[1]
            else:
                Rd = set().union(*R)
        elif self.is_vmem:
            if "store" in op:
                Rd = set().union(*R)
                if "x4" in op or "x3" in op:
                    self.sdata = R[0] if op.startswith("buffer_") else R[1]
            elif self.is_lds_dma:
                Rd = set().union(*R) | {"m0"}
            else:
                W = R[0]; Rd = set().union(*R[1:])
        elif self.is_salu:
            if op.startswith(("s_cmp", "s_cbranch", "s_branch", "s_waitcnt", "s_nop", "s_barrier", "s_sleep", "s_setprio", "s_endpgm", "s_bitcmp")):
                Rd = set().union(*R) if R else set()
            else:
                W = R[0] if R else set(); Rd = set().union(*R[1:]) if len(R) > 1 else set()
        self.W = W; self.R = Rd

def need(p, c):
    n = 0
    vW = {r for r in p.W if r[0] in "va" and r != "vcc"}
    sW = p.W - vW
    if p.is_valu:
        if vW & c.R:
            if c.is_dpp: n = max(n, 2)
            if c.is_perml: n = max(n, 2)
            if c.is_rl: n = max(n, 1)
            if c.is_mfma: n = max(n, 2)
            if p.is_trans and c.is_valu and not c.is_trans: n = max(n, 1)
            if p.is_trans and (c.is_ds or c.is_vmem): n = max(n, 1)
        if sW & c.R:
            if c.is_valu: n = max(n, 4 if (c.is_rl or c.op.startswith("v_writelane")) else 2)
            if c.is_vmem: n = max(n, 5)
        if "exec" in p.W:
            if c.is_mfma: n = max(n, 4)
            if c.is_dpp: n = max(n, 5)
            if c.is_rl or c.is_perml: n = max(n, 4)
        if p.is_dot and (vW & (c.R | c.W)):
            if c.op == p.op:
                if vW & c.srcAB: n = max(n, 3)
            else:
                n = max(n, 3)
    if p.is_mfma:
        t = {2: (2, 4, 5, 1), 4: (0, 6, 8, 3), 8: (0, 10, 12, 7)}[p.passes]
        if c.is_mfma:
            if p.W & c.srcC:
                if c.ctok == p.dtok and c.passes == p.passes: n = max(n, t[0])
                else: n = max(n, t[1])
            if p.W & c.srcAB: n = max(n, t[2])
            if (p.W & c.W) and not (p.W & c.srcC): n = max(n, t[2])
        elif p.W & (c.R | c.W):
            n = max(n, t[2])
        if c.is_valu and (p.srcC & c.W): n = max(n, t[3])
    if p.is_salu and "m0" in p.W and c.is_lds_dma: n = max(n, 1)
    if p.sdata and (p.sdata & c.W): n = max(n, 2 if (c.is_valu or c.is_mfma) else 1)
    return n

def worst(p):
    n = 0
    if p.is_valu:
        n = 2
        if p.is_dot: n = 3
        if any(not (r[0] in "va" and r != "vcc") for r in p.W): n = 5
    if p.is_mfma: n = {2: 5, 4: 8, 8: 12}[p.passes]
    if p.is_salu and "m0" in p.W: n = 1
    if p.sdata: n = 2
    return n

class Asm:
    def __init__(self):
        self.lines = []; self.hist = []; self.nnop = 0
    def raw(self, s): self.lines.append(s)
    def comment(self, s): self.lines.append("    ; " + s)
    def _push(self, ins):
        self.lines.append("    " + ins.text); self.hist.append(ins); self.hist = self.hist[-24:]
    def _pad(self, k):
        while k > 0:
            m = min(k, 16); self._push(Ins(f"s_nop {m-1}")); k -= m; self.nnop += 1
    def __call__(self, text):
        for t in text.strip().split("\n"):
            t = t.strip()
            if not t or t.startswith(";"): continue
            nf = t.endswith("!nf")
            if nf: t = t[:-3].strip()
            c = Ins(t)
            isbr = c.op.startswith(("s_cbranch", "s_branch")) and not nf
            d = 0; k = 0
            for p in reversed(self.hist):
                r = (worst(p) - 1) if isbr else need(p, c)
                k = max(k, r - d); d += p.slots
            self._pad(k)
            self._push(c)
    def label(self, name):
        d = 0; k = 0
        for p in reversed(self.hist):
            k = max(k, worst(p) - d); d += p.slots
        self._pad(k)
        self.lines.append(name + ":"); self.hist = []
    def text(self): return "\n".join(self.lines) + "\n"
```

```python
import sys, struct
from asmlib import Asm
NAME = "parallel_sum__gqa_block_cached__mixer_token_mlp__decode"
def f2u(x): return struct.unpack("<I", struct.pack("<f", x))[0]

WS_EPOCH = 0x0
WS_Q   = 0xD0000
WS_RK  = 0x1000
WS_ST  = 0x8000
WS_H1  = 0x10000
WS_H2  = 0x90000
WS_DBG = 0x200000
WS_NUM = 0x800000
DUAL = 0x100000
R = 9
RING = R * 4096
L_Q = 4 * RING
L_ZERO = L_Q + 1024
L_STAT = L_ZERO + 256
L_Y = L_STAT + 128
L_LVL = L_Y + 64
L_PRG = L_Y + 96
L_SMP = L_Y + 100
WS_SM = 0x400000
LDS_BYTES = L_Y + 128
NFIN = 64
DPP = "row_mask:0xf bank_mask:0xf"

HEADER = open("cdna_kernels/" + NAME + ".s.ref").read().split("; Override launch")[0]

def gen(W=6, nt=1, rot=1, stamps=0, wqnt=1, wont=1, bound=20000, pre=1, qsleep=0, Wend=6, qs=128, W0=0, q0=0, sdelay=64, ssleep=16, dual=0, outsc=0, qdelay=0, spin=0,
        h1sleep=0, h2sleep=0, Wp=0, qp0=0, qp1=128, qsplit=16, h2t=1, bprio=0, n1=1, n2=1, pst1=8, pst2=8, light=0, qmap=0, nbar=36, ctl=0, Wlo=5, Whi=7, r1=85, r2=171, qc0=40, qc1=128, cpt=24, pad1=0, pad2=0, l2h1=0, sp1=0, sp2=0, h2s=5, h2d=0, h3=0, fsleep=0, pt=0, na=1, nf=1, spa=1, spf=1, gate=0, fdelay=0, gx=0, bx=0, yx=0, px=0, shn=19, shy=14, shw=12, roty=0, nsp=-1, vx=0, fb=0, c0=600, tk=18, tv=13, Lk=64, fb0=3, c2=0, Wq2=8, epo=0, prt=0, pry=32, dbgt=0, ps=0, ps0=16, probe=-1, pk=4, pnom=0, pwg=-1, t0m=0, pd=0, t16=0, rc=0, nS=8, rb=40, rsl=24, rtry=4, rn1=26, rst=128, qf=0, ql2=0, t0n=1, qs2=2, qe=999, We=5, Wf=7, Wg=8, ce=0, c2e=-1, perm=0, Wa=0, qa=0, vt=0, vsl=0, bq=99, Wq3=0, c3=60, wl=0, ct=0, pq=0, ot=0, pbs=0, qt=0, np_=0, ka=0, om=0, sbx=0):
    a = Asm()
    WS_H1 = 0x280000; WS_H2 = 0x310000
    if nsp >= 0: shy = 14 + nsp; shn = 14
    def noff(n):
        v = vx if n >= 16 else 0
        n = (n & 15) ^ v
        if nsp < 0: return n << shn
        return ((n & ((1 << nsp) - 1)) << 14) | ((n >> nsp) << (19 + nsp))
    NFIN = 128 if h3 == 2 else 64
    if h3 == 2 and h2s == 5: h2s = 4
    WS_2A = 0x310000; WS_2B = 0x380000; SA = 1024 + pad2; SB = (8 << h2s) + sbx
    if wl: WS_H1 = 0x10000; WS_2A = 0x90000; WS_2B = 0xF0000
    S1 = 2048 + pad1; S2 = (128 << h2s) + pad2
    NT = " nt" if nt else ""
    NPF = 3
    def stamp(k):
        if stamps:
            a(f"s_memrealtime s[42:43]\ns_waitcnt lgkmcnt(0)\ns_mov_b32 s{70+k}, s42")
    def stamp_flush(base, n, srd):
        if stamps:
            a(f"s_lshl_b32 s68, s2, 7\ns_add_u32 s68, s68, {WS_DBG + base*4}\ns_mov_b64 exec, 1\nv_mov_b32 v1, 0")
            for k in range(n):
                a(f"v_mov_b32 v2, s{70+k}\nbuffer_store_dword v2, v1, {srd}, s68 offen offset:{4*k}")
            a("s_mov_b64 exec, -1")
    def srd(d, p, n):
        a(f"s_mov_b32 s{d}, s{p}\ns_mov_b32 s{d+1}, s{p+1}\ns_mov_b32 s{d+2}, {n}\ns_mov_b32 s{d+3}, 0x00020000")
    def allred(op, r, t, bits):
        for b in bits:
            if b == 0: a(f"{op} v{r}, v{r}, v{r} quad_perm:[1,0,3,2] {DPP}")
            if b == 1: a(f"{op} v{r}, v{r}, v{r} quad_perm:[2,3,0,1] {DPP}")
            if b == 2: a(f"{op} v{r}, v{r}, v{r} row_ror:4 {DPP}")
            if b == 3: a(f"{op} v{r}, v{r}, v{r} row_ror:8 {DPP}")
            if b == 4: a(f"v_mov_b32 v{t}, v{r}\nv_permlane16_swap_b32 v{r}, v{t}\n{op} v{r}, v{r}, v{t}")
            if b == 5: a(f"v_mov_b32 v{t}, v{r}\nv_permlane32_swap_b32 v{r}, v{t}\n{op} v{r}, v{r}, v{t}")
    def allred2(op, r0, r1, t0, t1, bits):
        for b in bits:
            if b < 4:
                m = ["quad_perm:[1,0,3,2]", "quad_perm:[2,3,0,1]", "row_ror:4", "row_ror:8"][b]
                a(f"{op} v{r0}, v{r0}, v{r0} {m} {DPP}\n{op} v{r1}, v{r1}, v{r1} {m} {DPP}")
            else:
                sw = "v_permlane16_swap_b32" if b == 4 else "v_permlane32_swap_b32"
                a(f"v_mov_b32 v{t0}, v{r0}\nv_mov_b32 v{t1}, v{r1}\n{sw} v{r0}, v{t0}\n{sw} v{r1}, v{t1}\n{op} v{r0}, v{r0}, v{t0}\n{op} v{r1}, v{r1}, v{t1}")
    def ln8(src, F, dst, T):
        for i in range(4):
            a(f"v_lshlrev_b32 v{F+2*i}, 16, v{src+i}\nv_and_b32 v{F+2*i+1}, s6, v{src+i}")
        a(f"v_add_f32 v{T}, v{F}, v{F+1}\nv_add_f32 v{T+1}, v{F+2}, v{F+3}\nv_add_f32 v{T+2}, v{F+4}, v{F+5}\nv_add_f32 v{T+3}, v{F+6}, v{F+7}")
        a(f"v_add_f32 v{T}, v{T}, v{T+1}\nv_add_f32 v{T+2}, v{T+2}, v{T+3}\nv_add_f32 v{T}, v{T}, v{T+2}")
        allred("v_add_f32", T, T+1, range(6))
        a(f"v_mul_f32 v{T}, {hex(f2u(1/512))}, v{T}")
        a(f"v_cvt_pk_bf16_f32 v{T+1}, v{T}, v{T}\nv_lshlrev_b32 v{T+1}, 16, v{T+1}")
        for i in range(8):
            a(f"v_sub_f32 v{dst}, v{F+i}, v{T}")
            if i < 2: a(f"v_mul_f32 v{T+2+i}, v{dst}, v{dst}")
            else: a(f"v_fmac_f32 v{T+2+(i&1)}, v{dst}, v{dst}")
        a(f"v_add_f32 v{T+2}, v{T+2}, v{T+3}")
        for i in range(8): a(f"v_sub_f32 v{F+i}, v{F+i}, v{T+1}")
        allred("v_add_f32", T+2, T+3, range(6))
        a(f"v_mul_f32 v{T+2}, {hex(f2u(1/512))}, v{T+2}")
        a(f"v_cvt_pk_bf16_f32 v{T+2}, v{T+2}, v{T+2}\nv_lshlrev_b32 v{T+2}, 16, v{T+2}")
        a(f"v_add_f32 v{T+2}, {hex(f2u(1e-5))}, v{T+2}")
        a(f"v_cvt_pk_bf16_f32 v{T+2}, v{T+2}, v{T+2}\nv_lshlrev_b32 v{T+2}, 16, v{T+2}")
        a(f"v_sqrt_f32 v{T+2}, v{T+2}")
        for i in range(4): a(f"v_cvt_pk_bf16_f32 v{dst+i}, v{F+2*i}, v{F+2*i+1}")
        a(f"v_cvt_pk_bf16_f32 v{T+2}, v{T+2}, v{T+2}\nv_lshlrev_b32 v{T+2}, 16, v{T+2}")
        a(f"v_rcp_f32 v{T+2}, v{T+2}")
        for i in range(4):
            a(f"v_lshlrev_b32 v{F+2*i}, 16, v{dst+i}\nv_and_b32 v{F+2*i+1}, s6, v{dst+i}")
        for i in range(8): a(f"v_mul_f32 v{F+i}, v{F+i}, v{T+2}")
        for i in range(4): a(f"v_cvt_pk_bf16_f32 v{dst+i}, v{F+2*i}, v{F+2*i+1}")

    def lnstat(src, F, T):
        for i in range(4):
            a(f"v_lshlrev_b32 v{F+2*i}, 16, v{src+i}\nv_and_b32 v{F+2*i+1}, s6, v{src+i}")
        a(f"v_add_f32 v{T}, v{F}, v{F+1}\nv_add_f32 v{T+1}, v{F+2}, v{F+3}\nv_add_f32 v{T+2}, v{F+4}, v{F+5}\nv_add_f32 v{T+3}, v{F+6}, v{F+7}")
        a(f"v_add_f32 v{T}, v{T}, v{T+1}\nv_add_f32 v{T+2}, v{T+2}, v{T+3}\nv_add_f32 v{T}, v{T}, v{T+2}")
        allred("v_add_f32", T, T+1, range(6))
        a(f"v_mul_f32 v{T}, {hex(f2u(1/512))}, v{T}")
        a(f"v_cvt_pk_bf16_f32 v{T+1}, v{T}, v{T}\nv_lshlrev_b32 v{T+1}, 16, v{T+1}")
        for i in range(8): a(f"v_sub_f32 v{F+i}, v{F+i}, v{T}")
        for i in range(8):
            if i < 2: a(f"v_mul_f32 v{T+2+i}, v{F+i}, v{F+i}")
            else: a(f"v_fmac_f32 v{T+2+(i&1)}, v{F+i}, v{F+i}")
        a(f"v_add_f32 v{T+2}, v{T+2}, v{T+3}")
        allred("v_add_f32", T+2, T+3, range(6))
        a(f"v_mul_f32 v{T+2}, {hex(f2u(1/512))}, v{T+2}")
        a(f"v_cvt_pk_bf16_f32 v{T+2}, v{T+2}, v{T+2}\nv_lshlrev_b32 v{T+2}, 16, v{T+2}")
        a(f"v_add_f32 v{T+2}, {hex(f2u(1e-5))}, v{T+2}")
        a(f"v_cvt_pk_bf16_f32 v{T+2}, v{T+2}, v{T+2}\nv_lshlrev_b32 v{T+2}, 16, v{T+2}")
        a(f"v_sqrt_f32 v{T+2}, v{T+2}")
        a(f"v_cvt_pk_bf16_f32 v{T+2}, v{T+2}, v{T+2}\nv_lshlrev_b32 v{T+2}, 16, v{T+2}")
        a(f"v_rcp_f32 v{T+2}, v{T+2}")

    a.raw(HEADER.rstrip("\n"))
    a.raw(f"; @launch grid=(256,1,1) block=({384 if h3 == 2 else 448},1,1) lds={LDS_BYTES}")
    a.raw('.amdgcn_target "amdgcn-amd-amdhsa--gfx950"')
    a.raw(".text"); a.raw(f".globl {NAME}_kernel"); a.raw(".p2align 8"); a.raw(f".type {NAME}_kernel,@function")
    a.raw(f"{NAME}_kernel:")
    a("s_cmp_ge_u32 s2, 256\ns_cbranch_scc1 L_end")
    if perm == 1: a("s_and_b32 s3, s2, 7\ns_lshl_b32 s3, s3, 5\ns_lshr_b32 s2, s2, 3\ns_or_b32 s2, s2, s3")
    if perm == 2: a("s_lshr_b32 s3, s2, 7\ns_xor_b32 s2, s2, s3")
    if ka: a("s_load_dwordx8 s[16:23], s[0:1], 0")
    else: a("s_load_dwordx16 s[16:31], s[0:1], 0\ns_load_dwordx8 s[32:39], s[0:1], 64\ns_load_dwordx2 s[40:41], s[0:1], 96")
    REST = "s_load_dwordx2 s[40:41], s[0:1], 96\ns_load_dwordx8 s[24:31], s[0:1], 32\ns_load_dwordx8 s[32:39], s[0:1], 64"
    if stamps or spin or fb: a("s_memrealtime s[70:71]")
    a("v_readfirstlane_b32 s3, v0\nv_and_b32 v0, 63, v0\ns_and_b32 s4, s2, 7\ns_lshr_b32 s5, s2, 3\ns_mov_b32 s6, 0xffff0000\ns_lshr_b32 s3, s3, 6")
    if gx: a(f"s_xor_b32 s4, s4, {gx}")
    if ka == 2:
        a("s_cmp_lt_u32 s3, 4\ns_cbranch_scc1 L_stream !nf\n" + REST + "\ns_cmp_eq_u32 s3, 4\ns_cbranch_scc1 L_ctrl !nf\ns_branch L_bwave !nf")
        a.raw("L_stream:")
    else: a("s_cmp_eq_u32 s3, 4\ns_cbranch_scc1 L_ctrl !nf\ns_cmp_gt_u32 s3, 4\ns_cbranch_scc1 L_bwave !nf")

    KOFF, VOFF, KRD, VRD, QAD = 2, 6, 8, 12, 14
    Q, S, FR, P, ACC, T = 32, 96, 112, 144, 152, 160
    a("s_setprio 2")
    a("v_lshrrev_b32 v20, 4, v0\nv_and_b32 v21, 15, v0")
    a("v_xor_b32 v22, v20, v21\nv_lshlrev_b32 v22, 4, v22")
    a(f"v_lshl_add_u32 v{KOFF}, v20, 8, v22")
    for j in range(1, 4): a(f"v_xor_b32 v{KOFF+j}, {64*j}, v{KOFF}")
    a(f"v_lshlrev_b32 v23, 2, v20\nv_xor_b32 v23, v23, v21\nv_lshlrev_b32 v23, 4, v23\nv_lshl_add_u32 v{VOFF}, v20, 8, v23")
    if yx: a(f"s_xor_b32 s5, s5, {yx}")
    a(f"s_lshl_b32 s7, s4, 23\ns_lshl_b32 s8, s5, {shy}\ns_add_u32 s7, s7, s8\ns_lshl_b32 s8, s3, {shw}\ns_add_u32 s7, s7, s8")
    if rot == 1: a("s_lshl_b32 s8, s4, 20\ns_and_b32 s8, s8, 0x780000\ns_or_b32 s7, s7, s8")
    elif rot > 1:
        a(f"s_lshl_b32 s8, s4, 2\ns_lshr_b32 s8, {hex(rot)}, s8\ns_and_b32 s8, s8, 15\ns_lshl_b32 s8, s8, {shn}\ns_or_b32 s7, s7, s8")
    if roty: a(f"s_and_b32 s8, s5, {roty}\ns_lshl_b32 s8, s8, {shn}\ns_xor_b32 s7, s7, s8")
    a(f"s_mul_i32 s9, s3, {RING}")
    a("s_mov_b32 s46, 0x4000000\ns_mov_b32 s47, 0x00020000\ns_mov_b32 s50, 0x4000000\ns_mov_b32 s51, 0x00020000")
    a("s_waitcnt lgkmcnt(0)")
    a("s_mov_b32 s44, s18\ns_mov_b32 s45, s19\ns_mov_b32 s48, s20\ns_mov_b32 s49, s21")
    state = dict(q=0, land=-1)
    def win(q):
        if q >= qs: return Wend
        if q < qa: return Wa
        if q < q0: return W0
        return W
    def issue():
        q = state["q"]; n, j = divmod(q, 4)
        if j == 0:
            a(f"s_xor_b32 s10, s7, {noff(n)}\ns_add_u32 m0, s9, {(n % R) * 4096}")
        Wq = win(q)
        if Wp > Wq and qp0 <= q < qp1 and q >= win(0):
            if fb & 2:
                w1, w2 = (Wp, Wq2) if q < qe else (Wf, Wg)
                if q >= qe: Wq = We
                if Wq3:
                    lab = False
                    if state["land"] < q - w2: a(f"s_cmp_eq_u32 s15, 2\ns_cbranch_scc1 L_w{q} !nf\ns_waitcnt vmcnt({w2-1})"); lab = True
                    if state["land"] < q - w1: a(f"s_cmp_lg_u32 s15, 0\ns_cbranch_scc1 L_w{q} !nf\ns_waitcnt vmcnt({w1-1})"); lab = True
                    if state["land"] < q - Wq: a(f"s_cbranch_vccnz L_w{q} !nf\ns_waitcnt vmcnt({Wq-1})"); lab = True
                    if lab: a.raw(f"L_w{q}:")
                    w2 = Wq3
                elif state["land"] < q - w1 and w1 < w2:
                    a(f"s_cmp_lg_u32 s15, 0\ns_cbranch_scc1 L_w{q} !nf\ns_waitcnt vmcnt({w1-1})")
                    if state["land"] < q - Wq and Wq < w1:
                        a(f"s_cbranch_vccnz L_w{q} !nf\ns_waitcnt vmcnt({Wq-1})")
                    a.raw(f"L_w{q}:")
                elif state["land"] < q - Wq:
                    a(f"s_cbranch_vccnz L_w{q} !nf\ns_waitcnt vmcnt({Wq-1})"); a.raw(f"L_w{q}:")
                Wq = w2
            else:
                if state["land"] < q - Wq:
                    a(f"s_cbranch_vccnz L_w{q} !nf\ns_waitcnt vmcnt({Wq-1})"); a.raw(f"L_w{q}:")
                Wq = Wp
        if ctl and qc0 <= q < qc1:
            if state["land"] < q - Wq:
                a(f"s_cbranch_vccnz L_h{q} !nf")
                if state["land"] < q - Wlo and Wlo < Wq:
                    a(f"s_cmp_lg_u32 s13, 0\ns_cbranch_scc1 L_m{q} !nf\ns_waitcnt vmcnt({Wlo-1})"); a.raw(f"L_m{q}:")
                a(f"s_waitcnt vmcnt({Wq-1})"); a.raw(f"L_h{q}:")
            elif state["land"] < q - Wlo:
                a(f"s_cmp_lg_u32 s13, 0\ns_cbranch_scc1 L_m{q} !nf\ns_waitcnt vmcnt({Wlo-1})"); a.raw(f"L_m{q}:")
            Wq = Whi
        if q >= Wq and state["land"] < q - Wq:
            a(f"s_waitcnt vmcnt({Wq-1})"); state["land"] = q - Wq
        if n < 16: a(f"buffer_load_dwordx4 v{KOFF+j}, s[44:47], s10 offen offset:{1024*j}{NT} lds")
        else:      a(f"buffer_load_dwordx4 v{VOFF}, s[48:51], s10 offen offset:{1024*j}{NT} lds")
        state["q"] = q + 1
        if pq and q + 1 == pq: a(f"ds_write_b32 v28, v28 offset:{L_SMP - L_PRG}")
    def landed(idx):
        if state["land"] < idx:
            a(f"s_waitcnt vmcnt({state['q'] - idx - 1})"); state["land"] = idx
    for _ in range(min(bq, win(0))): issue()
    a(f"v_lshl_add_u32 v{KRD}, v21, 8, v22\nv_add_u32 v{KRD}, s9, v{KRD}")
    for m in range(1, 4): a(f"v_xor_b32 v{KRD+m}, {64*m}, v{KRD}")
    a("v_lshrrev_b32 v23, 2, v21")
    a("v_bfe_u32 v24, v0, 1, 1\nv_lshl_add_u32 v24, v20, 1, v24")
    a("v_lshlrev_b32 v25, 2, v23\nv_xor_b32 v24, v24, v25\nv_lshlrev_b32 v24, 4, v24")
    a("v_lshl_add_u32 v24, v23, 8, v24\nv_and_b32 v25, 1, v0\nv_lshl_add_u32 v24, v25, 3, v24")
    a(f"v_add_u32 v{VRD}, s9, v24\nv_xor_b32 v{VRD+1}, 128, v{VRD}")
    a(f"v_and_b32 v24, 3, v0\nv_lshlrev_b32 v24, 8, v24\nv_lshl_add_u32 v24, v20, 4, v24\nv_add_u32 v24, {L_Q}, v24")
    a(f"v_lshlrev_b32 v25, 4, v20\nv_add_u32 v25, {L_ZERO}, v25")
    for t in range(4):
        a(f"v_cmp_eq_u32 vcc, {t}, v23\nv_cndmask_b32 v{QAD+t}, v25, v24, vcc")
    a(f"v_lshlrev_b32 v26, 4, v0\nv_add_u32 v26, s9, v26")
    a(f"v_lshlrev_b32 v27, 3, v0\ns_lshl_b32 s8, s3, 5\ns_add_u32 s8, s8, {L_STAT}\nv_add_u32 v27, s8, v27")
    a(f"s_mov_b32 s11, {hex(f2u(128 ** -0.5))}\ns_mov_b32 s12, {hex(f2u(1.4426950408889634))}")
    if Wp: a(f"s_cmp_lt_u32 s2, {NFIN}\ns_cselect_b64 vcc, -1, 0")
    if ctl: a(f"s_mov_b64 vcc, 0\ns_mov_b32 s13, -1\nv_mov_b32 v28, {L_LVL}")
    if qf: a(f"v_mov_b32 v28, {L_PRG}\ns_mov_b32 s14, {bound*64}\ns_barrier")
    if ka and stamps: a("s_load_dwordx2 s[40:41], s[0:1], 96")
    while state["q"] < win(0): issue()
    if stamps:
        landed(0); stamp(1)
    STA = 176
    nst = 0
    while state["q"] < nbar:
        if nst < np_ and state["land"] >= 4 * nst + 3:
            for m in range(4): a(f"ds_read_b128 v[{STA+16*nst+4*m}:{STA+16*nst+4*m+3}], v{KRD+m} offset:{nst*4096}")
            nst += 1
        if state["q"] == 4 * R:
            assert nst == np_; a("s_waitcnt lgkmcnt(0)")
        issue()
    stamp(2)
    if probe == 101: a("s_memrealtime s[72:73]\ns_waitcnt lgkmcnt(0)")
    if qf:
        a.label("L_qf")
        a("ds_read_b32 v29, v28\ns_sub_u32 s14, s14, 1\ns_cbranch_scc1 L_qfd\ns_waitcnt lgkmcnt(0)\nv_readfirstlane_b32 s13, v29\ns_cmp_eq_u32 s13, -1\ns_cbranch_scc1 L_qf")
        a.label("L_qfd")
    else: a("s_barrier")
    if probe == 102: a("s_memrealtime s[72:73]\ns_waitcnt lgkmcnt(0)")
    stamp(3)
    def qread(t):
        for m in range(4): a(f"ds_read_b128 v[{Q+16*t+4*m}:{Q+16*t+4*m+3}], v{QAD+t} offset:{64*m}")
    if fb: a(f"v_mov_b32 v28, {L_PRG}\nds_read_b32 v29, v28\ns_mov_b32 s15, 0")
    qread(0)
    MX = T + 8
    def thr(L): return int(c0 + (min(L, Lk) - 30) * tk / 10 + max(L - Lk, 0) * tv / 10) + (ce if state["q"] >= qe else 0)
    PROF = {6: 7, 10: 8, 13: 9, 16: 10, 19: 11, 22: 12, 25: 13, 28: 14, 31: 15}
    DB = {4: 1, 10: 2, 16: 3, 22: 4, 28: 5}
    def fb_pre(n):
        if fb & 1 and n >= fb0 and (state["q"] < 128 or (stamps and n in PROF)): a("s_memrealtime s[42:43]")
        if rc and nS < n < rn1: a("ds_read_b32 v29, v28")
        if fb0 <= n <= t0n: a("ds_read_b32 v29, v28")
    def fb_post(n):
        if fb and (n == 1 or fb0 <= n <= t0n): a("v_readfirstlane_b32 s13, v29")
        if fb & 1 and n >= fb0 and (state["q"] < 128 or (stamps and n in PROF)):
            if stamps and n in PROF: a(f"s_mov_b32 s{70 + PROF[n]}, s42")
            if rc and nS < n < rn1: a("v_readfirstlane_b32 s13, v29")
            if rc and n == nS:
                state["thrS"] = thr(state["land"])
                a(f"s_cmp_lg_u32 s15, 0\ns_cselect_b32 s8, 0, {int((Wq2-Wp)*tk/10)}\ns_cmp_lg_u64 vcc, 0\ns_cselect_b32 s8, s8, {int((Wq2-W)*tk/10)}\ns_sub_u32 s8, s42, s8")
                a(f"s_and_b32 s8, s8, -2\nv_mov_b32 v29, s8\ns_cmp_lg_u32 s3, 0\ns_cbranch_scc1 L_nosmp !nf\nds_write_b32 v28, v29 offset:{L_SMP-L_PRG}")
                a.raw("L_nosmp:")
            a(f"s_sub_u32 s42, s42, s13\ns_cmp_gt_i32 s42, {thr(state['land'])}\ns_cselect_b64 vcc, -1, 0")
            if dbgt and n in DB: a(f"s_mov_b32 s{70 + DB[n]}, s42")
            if probe == n: a("s_mov_b32 s72, s42")
            if fb & 2: a(f"s_cmp_gt_i32 s42, {thr(state['land']) + (c2e if c2e >= 0 and state['q'] >= qe else c2)}\ns_cselect_b32 s15, 1, 0")
            if fb & 2 and Wq3: a(f"s_cmp_gt_i32 s42, {thr(state['land']) + c3}\ns_cselect_b32 s15, 2, s15")
    def prework(u):
        s = S + 4 * u
        for rnd in range(2):
            a(f"v_cvt_pk_bf16_f32 v{T}, v{s}, v{s+1}\nv_cvt_pk_bf16_f32 v{T+1}, v{s+2}, v{s+3}")
            a(f"v_lshlrev_b32 v{s}, 16, v{T}\nv_and_b32 v{s+1}, s6, v{T}\nv_lshlrev_b32 v{s+2}, 16, v{T+1}\nv_and_b32 v{s+3}, s6, v{T+1}")
            if rnd == 0:
                for r in range(4): a(f"v_mul_f32 v{s+r}, s11, v{s+r}")
        if u == 0: a(f"v_max_f32 v{MX}, v{s}, v{s+1}")
        else: a(f"v_max3_f32 v{MX}, v{s}, v{s+1}, v{MX}")
        a(f"v_max3_f32 v{MX}, v{s+2}, v{s+3}, v{MX}")
    def can_issue(nc): return state["q"] < 128 and (state["q"] // 4 - R) < max(nc, np_)
    def softmax():
        prework(3)
        allred("v_max_f32", MX, T, [2, 3, 4, 5])
        a(f"v_mul_f32 v{T+2}, s12, v{MX}")
        if can_issue(16): issue()
        for u in range(4):
            s = S + 4 * u
            for r in range(4): a(f"v_fma_f32 v{s+r}, v{s+r}, s12, -v{T+2}")
            for r in range(4): a(f"v_exp_f32 v{s+r}, v{s+r}")
            a(f"v_cvt_pk_bf16_f32 v{P+2*u}, v{s}, v{s+1}\nv_cvt_pk_bf16_f32 v{P+2*u+1}, v{s+2}, v{s+3}")
            a(f"v_add_f32 v{T}, v{s}, v{s+1}\nv_add_f32 v{T+1}, v{s+2}, v{s+3}")
            if u == 0: a(f"v_add_f32 v{MX+1}, v{T}, v{T+1}")
            else: a(f"v_add_f32 v{T}, v{T}, v{T+1}\nv_add_f32 v{MX+1}, v{MX+1}, v{T}")
            if u == 1 and can_issue(16): issue()
        allred("v_add_f32", MX + 1, T, [2, 3, 4, 5])
        a(f"s_mov_b64 exec, 15\nds_write_b64 v27, v[{MX}:{MX+1}]\ns_mov_b64 exec, -1")
        stamp(4)
    def consume(n):
        landed(4 * n + 3)
        so = (n % R) * 4096; f = FR + 16 * (n & 1)
        if n < np_: f = STA + 16 * n
        rd = ctl and 3 <= n < 30
        fb_pre(n)
        if rd: a("ds_read_b32 v29, v28")
        if ctl & 4 and n == cpt: a(f"ds_write_b32 v28, v28 offset:{L_PRG - L_LVL}")
        if n < 16:
            u, t = divmod(n, 4)
            if n >= np_:
                for m in range(4): a(f"ds_read_b128 v[{f+4*m}:{f+4*m+3}], v{KRD+m} offset:{so}")
            if n < 3: qread(n + 1); a("s_waitcnt lgkmcnt(4)")
            else: a("s_waitcnt lgkmcnt(0)")
            fb_post(n)
            if rd: a("v_readfirstlane_b32 s13, v29\nv_cmp_eq_u32 vcc, 1, v29")
            for m in range(4):
                c = "0" if (t == 0 and m == 0) else f"v[{S+4*u}:{S+4*u+3}]"
                a(f"v_mfma_f32_16x16x32_bf16 v[{S+4*u}:{S+4*u+3}], v[{f+4*m}:{f+4*m+3}], v[{Q+16*t+4*m}:{Q+16*t+4*m+3}], {c}")
            if n in (4, 8, 12): prework(u - 1)
        else:
            u, t = divmod(n - 16, 4)
            for j in range(4):
                for hf in range(2):
                    a(f"ds_read_b64_tr_b16 v[{f+4*j+2*hf}:{f+4*j+2*hf+1}], v{VRD+hf} offset:{so+1024*j}")
            a("s_waitcnt lgkmcnt(0)")
            fb_post(n)
            if rd: a("v_readfirstlane_b32 s13, v29\nv_cmp_eq_u32 vcc, 1, v29")
            for j in range(4):
                for hf in range(2):
                    c = "0" if (n == 16 and j == 0) else f"v[{ACC+4*hf}:{ACC+4*hf+3}]"
                    a(f"v_mfma_f32_4x4x4_16b_bf16 v[{ACC+4*hf}:{ACC+4*hf+3}], v[{P+2*u}:{P+2*u+1}], v[{f+4*j+2*hf}:{f+4*j+2*hf+1}], {c} cbsz:4 abid:{4*j+t}")
    nc = 0
    while nc < 32:
        if state["land"] >= 4 * nc + 3 or not can_issue(nc):
            consume(nc); nc += 1
            if nc == 16: softmax()
            if can_issue(nc): issue()
        else:
            issue()
    a(f"ds_write_b128 v26, v[{ACC}:{ACC+3}]\nds_write_b128 v26, v[{ACC+4}:{ACC+7}] offset:1024")
    a("s_waitcnt lgkmcnt(0)\ns_barrier")
    if 0 <= probe < 104:
        a("s_memrealtime s[42:43]\ns_cmp_lg_u32 s3, 0\ns_cbranch_scc1 L_end")
        if pwg >= 0: a(f"s_cmp_lg_u32 s2, {pwg}\ns_cbranch_scc1 L_end")
        a("s_waitcnt lgkmcnt(0)")
        if probe == 100: a("s_sub_u32 s72, s70, s13")
        if probe in (101, 102): a("s_sub_u32 s72, s72, s13")
        if probe == 103: a("s_sub_u32 s72, s42, s13")
        a(f"s_sub_u32 s72, s72, {pnom}\ns_mul_i32 s72, s72, {pk}\ns_add_u32 s72, s72, 3000\ns_min_i32 s72, s72, 20000\ns_mov_b32 s74, 100000")
        a.label("L_probe")
        a("s_memrealtime s[42:43]\ns_sub_u32 s74, s74, 1\ns_cmp_eq_u32 s74, 0\ns_cbranch_scc1 L_end\ns_waitcnt lgkmcnt(0)\ns_sub_u32 s42, s42, s13\ns_cmp_lt_i32 s42, s72\ns_cbranch_scc1 L_probe")
    if dbgt:
        a("s_memrealtime s[42:43]\ns_cmp_lg_u32 s3, 0\ns_cbranch_scc1 L_end\ns_waitcnt lgkmcnt(0)\ns_sub_u32 s76, s42, s13\ns_sub_u32 s70, s70, s13")
        srd(52, 38, 256)
        a("s_sleep 100\ns_mov_b64 exec, 1\nv_mov_b32 v1, 0")
        for k in range(7):
            a(f"v_mov_b32 v2, s{70+k}\nbuffer_atomic_add v2, v1, s[52:55], 0 offen offset:{4*k} sc1\nbuffer_atomic_smax v2, v1, s[52:55], 0 offen offset:{32+4*k} sc1")
    if stamps:
        stamp(5)
        a("s_cmp_lg_u32 s3, 0\ns_cbranch_scc1 L_end")
        srd(52, 40, WS_NUM)
        a("s_sleep 100")
        a("s_getreg_b32 s76, hwreg(HW_REG_HW_ID, 8, 8)\ns_getreg_b32 s77, hwreg(HW_REG_XCC_ID, 0, 4)\ns_lshl_b32 s77, s77, 8\ns_add_u32 s76, s76, s77\ns_add_u32 s76, s76, s70")
        if fb: a("s_mov_b32 s77, s13")
        stamp_flush(16, 16 if fb else 7, "s[52:55]")
    a("s_endpgm")

    a.label("L_ctrl")
    XR, F, XN, T = 4, 8, 16, 20
    X2, LO, HI, WQ, AC = 24, 32, 48, 64, 128
    G0 = 32
    if ka == 1: a(REST)
    a("s_setprio 3")
    a("v_lshlrev_b32 v1, 4, v0")
    a("v_lshrrev_b32 v3, 3, v0\nv_lshlrev_b32 v2, 17, v3\nv_and_b32 v4, 7, v0\nv_lshl_add_u32 v2, v4, 4, v2\nv_lshlrev_b32 v3, 5, v3")
    if qmap == 0:
        a("s_and_b32 s7, s4, 1\ns_lshl_b32 s7, s7, 1\ns_lshr_b32 s8, s5, 4\ns_add_u32 s7, s7, s8")
        a("s_lshr_b32 s63, s4, 1\ns_lshl_b32 s63, s63, 4\ns_and_b32 s9, s5, 15\ns_add_u32 s63, s63, s9")
        if bx: a(f"s_xor_b32 s63, s63, {bx}")
    else:
        a("s_lshr_b32 s7, s5, 3\ns_lshl_b32 s63, s4, 3\ns_and_b32 s9, s5, 7\ns_add_u32 s63, s63, s9")
    a("s_lshl_b32 s8, s7, 20\ns_lshl_b32 s9, s63, 7\ns_add_u32 s8, s8, s9")
    a(f"s_lshr_b32 s69, s63, 3\ns_lshl_b32 s69, s69, 14\ns_lshl_b32 s9, s7, 12\ns_add_u32 s69, s69, s9\ns_and_b32 s9, s63, 7\ns_lshl_b32 s9, s9, 9\ns_add_u32 s69, s69, s9\ns_add_u32 s69, s69, {WS_Q}")
    a("s_lshl_b32 s7, s7, 8")
    a("s_lshl_b32 s13, s4, 5\ns_add_u32 s13, s13, s5")
    a(f"s_mov_b32 s46, 1028\ns_mov_b32 s47, 0x00020000\ns_mov_b32 s50, 0x400000\ns_mov_b32 s51, 0x00020000\ns_mov_b32 s54, {WS_NUM}\ns_mov_b32 s55, 0x00020000")
    if qf:
        a(f"v_lshlrev_b32 v141, 2, v0\nv_mov_b32 v140, 0\nv_mov_b32 v139, -1\nv_add_u32 v141, {L_ZERO}, v141\nds_write_b32 v141, v140\nds_write_b32 v141, v139 offset:256")
    if ql2:
        a(f"v_and_b32 v147, 7, v0\nv_lshlrev_b32 v147, 6, v147\nv_lshrrev_b32 v148, 4, v0\nv_lshl_add_u32 v147, v148, 4, v147\nv_add_u32 v147, {DUAL}, v147")
        a(f"v_mov_b32 v148, 0\nv_mov_b32 v149, 0\nv_mov_b32 v150, 0\nv_mov_b32 v151, 1\nv_add_u32 v152, {DUAL}, v1")
    a("s_waitcnt lgkmcnt(0)")
    stamp(11)
    if not stamps: a("s_load_dword s14, s[40:41], 0")
    a("s_mov_b32 s44, s16\ns_mov_b32 s45, s17\ns_mov_b32 s48, s22\ns_mov_b32 s49, s23\ns_mov_b32 s52, s40\ns_mov_b32 s53, s41")
    if ql2 and ql2 & 1:
        a("s_mov_b32 exec_lo, 0x00ff00ff\ns_mov_b32 exec_hi, 0x00ff00ff\nbuffer_store_dwordx4 v[148:151], v147, s[52:55], s69 offen\ns_mov_b64 exec, -1")
    a(f"buffer_load_dwordx4 v[{XR}:{XR+3}], v1, s[44:47], 0 offen")
    a(f"buffer_load_dwordx4 v[{X2}:{X2+3}], v3, s[44:47], s7 offen\nbuffer_load_dwordx4 v[{X2+4}:{X2+7}], v3, s[44:47], s7 offen offset:16")
    def wqload(i):
        a(f"buffer_load_dwordx4 v[{WQ+4*i}:{WQ+4*i+3}], v2, s[48:51], s8 offen" + (" nt" if wqnt else ""))
        if i < 15: a(f"s_add_u32 s8, s8, 8192")
    for i in range(qsplit): wqload(i)
    a(f"s_lshl_b32 s56, s13, 7\ns_add_u32 s56, s56, {WS_ST}")
    a(f"s_mul_i32 s57, s13, {S1}\ns_add_u32 s57, s57, {WS_H1}")
    a(f"s_and_b32 s58, s5, 1\ns_lshl_b32 s58, s58, 7\ns_lshr_b32 s9, s5, 1\ns_lshl_b32 s9, s9, 3\ns_add_u32 s58, s58, s9\ns_add_u32 s58, s58, s4")
    if h2t:
        a(f"s_lshr_b32 s9, s58, 7\ns_mul_i32 s9, s9, {32*S2}\ns_and_b32 s58, s58, 127\ns_lshl_b32 s58, s58, {h2s}\ns_add_u32 s58, s58, s9\ns_add_u32 s58, s58, {WS_H2}")
    else:
        a(f"s_lshl_b32 s58, s58, 10\ns_add_u32 s58, s58, {WS_H2}")
    if h3: a(f"s_mul_i32 s58, s13, {SA}\ns_add_u32 s58, s58, {WS_2A}")
    if qf: a("s_barrier")
    else:
        a(f"v_lshlrev_b32 v141, 2, v0\nv_mov_b32 v140, 0\nv_mov_b32 v139, -1\nv_add_u32 v141, {L_ZERO}, v141\nds_write_b32 v141, v140\nds_write_b32 v141, v139 offset:256")
    def prefetch_code(lab, n):
        a(f"s_getpc_b64 s[60:61]")
        a.raw(f"L_pc_{lab}:")
        a(f"s_sub_u32 s60, s60, L_pc_{lab}-{NAME}_kernel\ns_subb_u32 s61, s61, 0")
        a(f"v_lshlrev_b32 v228, 7, v0")
        for k in range(n):
            a(f"v_min_u32 v224, L_code_end-{NAME}_kernel-128, v228\nv_mov_b32 v225, s61\nv_add_co_u32 v224, vcc, s60, v224\nv_addc_co_u32 v225, vcc, 0, v225, vcc")
            a(f"global_load_dword v226, v[224:225], off")
            if k < n - 1: a("v_add_u32 v228, 0x2000, v228")
    def tags():
        a("s_waitcnt lgkmcnt(0)\ns_add_u32 s14, s14, 1\ns_and_b32 s15, s14, 0xffff\nv_mov_b32 v30, s15\ns_and_b32 s15, s14, 0xff\nv_mov_b32 v31, s15")
    def rank_issue(c):
        a(f"s_lshl_b32 s8, s2, 2\ns_add_u32 s8, s8, {WS_RK + 1024*c}\ns_mov_b32 s9, {WS_RK + 1024*c}\nv_mov_b32 v20, s14\nv_mov_b32 v21, 0")
        a(f"buffer_load_dwordx4 v[24:27], v1, s[52:55], s9 offen sc1")
        a(f"s_mov_b64 exec, 1\nbuffer_store_dword v20, v21, s[52:55], s8 offen sc1\ns_mov_b64 exec, -1")
    def rank_use():
        a("v_cmp_eq_u32 s[8:9], v20, v24\nv_cmp_eq_u32 s[10:11], v20, v25\nv_cmp_eq_u32 s[60:61], v20, v26\nv_cmp_eq_u32 vcc, v20, v27")
        a("s_bcnt1_i32_b64 s8, s[8:9]\ns_bcnt1_i32_b64 s9, s[10:11]\ns_bcnt1_i32_b64 s10, s[60:61]\ns_bcnt1_i32_b64 s11, vcc")
        a("s_add_u32 s8, s8, s9\ns_add_u32 s10, s10, s11\ns_add_u32 s8, s8, s10")
        a(f"s_cmp_lt_u32 s8, {r1}\ns_cselect_b32 s9, 0, -1\ns_cmp_ge_u32 s8, {r2}\ns_cselect_b32 s9, 1, s9")
        a(f"v_mov_b32 v21, s9\nv_mov_b32 v22, {L_LVL}\nds_write_b32 v22, v21")
    RW, BW = 64, 128
    def wo_block():
        a("s_mov_b32 s48, s24\ns_mov_b32 s49, s25")
        a("v_lshrrev_b32 v2, 5, v0\nv_lshlrev_b32 v2, 12, v2\nv_and_b32 v3, 31, v0\nv_lshl_add_u32 v2, v3, 4, v2")
        a("s_lshl_b32 s8, s4, 19\ns_lshr_b32 s9, s5, 1\ns_lshl_b32 s9, s9, 13\ns_add_u32 s8, s8, s9\ns_and_b32 s9, s5, 1\ns_lshl_b32 s9, s9, 9\ns_add_u32 s8, s8, s9")
        for h in range(4):
            for q in range(4):
                a(f"buffer_load_dwordx4 v[{RW+16*q+4*h}:{RW+16*q+4*h+3}], v2, s[48:51], s8 offen offset:{1024*q}" + (" nt" if wont else ""))
            if h < 3: a("s_add_u32 s8, s8, 0x20000")
        a("s_lshr_b32 s8, s2, 5\ns_and_b32 s8, s8, 1\ns_lshl_b32 s62, s8, 8")
        a("s_and_b32 s9, s2, 15\ns_lshl_b32 s9, s9, 4\ns_add_u32 s62, s62, s9")
        a("s_lshr_b32 s9, s2, 4\ns_and_b32 s9, s9, 1\ns_lshl_b32 s9, s9, 2\ns_add_u32 s62, s62, s9\ns_lshl_b32 s62, s62, 1")
        a("v_and_b32 v4, 1, v0\nv_lshrrev_b32 v5, 5, v0\nv_bfe_u32 v6, v0, 4, 1\nv_lshl_add_u32 v5, v5, 1, v6")
        a("v_lshl_add_u32 v7, v4, 3, v5\nv_lshlrev_b32 v7, 1, v7")
        a(f"v_lshl_add_u32 v8, v4, 2, v5\nv_lshlrev_b32 v8, 2, v8\nv_add_u32 v8, {L_Y}, v8")
        a("buffer_load_ushort v9, v7, s[44:47], s62 offen")
        if ctl & 1:
            a("s_waitcnt vmcnt(18)"); rank_use()
        if ct == 1:
            a("s_getpc_b64 s[60:61]\nv_mov_b32 v224, s60\nv_mov_b32 v225, s61\ns_mov_b64 exec, 1\nglobal_load_dword v226, v[224:225], off\ns_mov_b64 exec, -1")
        if ql2: state["t0use"](18 + (ct == 1))
        a("s_mov_b32 s8, 0x05040100\ns_mov_b32 s9, 0x07060302\ns_waitcnt vmcnt(0)")
        for q in range(4):
            for w in range(4):
                r = lambda h: RW + 16 * q + 4 * h + w
                b = BW + 16 * q + 4 * w
                a(f"v_perm_b32 v{b}, v{r(1)}, v{r(0)}, s8\nv_perm_b32 v{b+1}, v{r(3)}, v{r(2)}, s8")
                a(f"v_perm_b32 v{b+2}, v{r(1)}, v{r(0)}, s9\nv_perm_b32 v{b+3}, v{r(3)}, v{r(2)}, s9")
        a("v_lshlrev_b32 v9, 16, v9")
    stamp(1)
    a(f"s_waitcnt vmcnt({qsplit+2})")
    stamp(12)
    lnstat(XR, F, T)
    for i in range(qsplit, 16): wqload(i)
    a(f"s_waitcnt vmcnt(16)")
    for k in range(8): a(f"v_lshlrev_b32 v{HI+2*k}, 16, v{X2+k}\nv_and_b32 v{HI+2*k+1}, s6, v{X2+k}")
    for k in range(16): a(f"v_sub_f32 v{HI+k}, v{HI+k}, v{T+1}")
    for k in range(8): a(f"v_cvt_pk_bf16_f32 v{LO+k}, v{HI+2*k}, v{HI+2*k+1}")
    for k in range(8): a(f"v_lshlrev_b32 v{HI+2*k}, 16, v{LO+k}\nv_and_b32 v{HI+2*k+1}, s6, v{LO+k}")
    for k in range(16): a(f"v_mul_f32 v{HI+k}, v{HI+k}, v{T+2}")
    for k in range(16): a(f"v_cvt_pk_bf16_f32 v{LO+k}, v{HI+k}, 0\nv_cvt_pk_bf16_f32 v{HI+k}, 0, v{HI+k}")
    for e in range(8): a(f"v_mov_b32 v{AC+e}, 0")
    a("v_and_b32 v2, 7, v0\nv_lshlrev_b32 v2, 6, v2\nv_lshrrev_b32 v3, 4, v0\nv_lshl_add_u32 v2, v3, 4, v2")
    stamp(2)
    if stamps: a("s_load_dword s14, s[40:41], 0")
    for i in range(16):
        if i % 4 == 0: a(f"s_waitcnt vmcnt({12 - i})")
        for w in range(4):
            a(f"v_dot2c_f32_bf16 v{AC+2*w}, v{WQ+4*i+w}, v{LO+i}\nv_dot2c_f32_bf16 v{AC+2*w+1}, v{WQ+4*i+w}, v{HI+i}")
    for e in range(4): a(f"v_permlane32_swap_b32 v{AC+e}, v{AC+e+4}")
    for e in range(4): a(f"v_add_f32 v{AC+e}, v{AC+e}, v{AC+e+4}")
    a(f"v_permlane16_swap_b32 v{AC}, v{AC+2}\nv_permlane16_swap_b32 v{AC+1}, v{AC+3}")
    a(f"v_add_f32 v{AC}, v{AC}, v{AC+2}\nv_add_f32 v{AC+1}, v{AC+1}, v{AC+3}")
    allred2("v_add_f32", AC, AC + 1, 0, 0, [3])
    tags()
    a(f"v_mov_b32 v{AC+2}, s14\nv_mov_b32 v{AC+3}, s{70 if fb else 14}\ns_mov_b32 s10, s14\ns_mov_b32 s11, s14")
    if fb: a(f"v_mov_b32 v142, 0\nv_mov_b32 v143, {L_PRG}\ns_mov_b32 s12, {WS_Q}")
    if fb and t0m:
        if qmap == 0: a("v_bfe_u32 v142, v0, 1, 2\nv_lshlrev_b32 v142, 15, v142\nv_and_b32 v146, 1, v0\nv_lshl_add_u32 v142, v146, 13, v142")
        else: a("v_and_b32 v142, 7, v0\nv_lshlrev_b32 v142, 14, v142")
        if ql2: a(f"v_and_b32 v142, 7, v0\nv_lshlrev_b32 v142, 7, v142\ns_mov_b32 s12, {WS_RK}")
    if ql2: a(f"v_mov_b32 v148, v{AC}\nv_mov_b32 v149, v{AC+1}\nv_mov_b32 v150, s14\nv_mov_b32 v151, s14")
    stamp(13)
    def pub_b(): a(f"s_mov_b32 exec_lo, 0x00ff00ff\ns_mov_b32 exec_hi, 0x00ff00ff\nbuffer_store_dwordx4 v[{AC}:{AC+3}], v2, s[52:55], s69 offen sc1\ns_mov_b64 exec, -1")
    if ql2: a("s_mov_b32 exec_lo, 0x00ff00ff\ns_mov_b32 exec_hi, 0x00ff00ff\nbuffer_store_dwordx4 v[148:151], v147, s[52:55], s69 offen\ns_mov_b64 exec, -1")
    else: pub_b()
    stamp(3)
    if pre == 1: prefetch_code("a", NPF)
    a(f"s_lshl_b32 s64, s4, 14\ns_add_u32 s64, s64, {WS_Q}\ns_add_u32 s65, s64, 4096\ns_add_u32 s66, s64, 8192\ns_add_u32 s67, s64, 12288\ns_mov_b32 s59, {bound}")
    a(f"v_lshlrev_b32 v3, 2, v0\nv_add_u32 v3, {L_Q}, v3")
    d = qdelay
    while d > 0:
        a(f"s_sleep {min(d, 127)}"); d -= 127
    if qt:
        a(f"s_memrealtime s[42:43]\ns_waitcnt lgkmcnt(0)\ns_sub_u32 s8, s42, s70\ns_sub_u32 s8, {qt}, s8\ns_min_i32 s8, s8, {qt}")
        a.label("L_qw")
        a("s_cmp_lt_i32 s8, 6\ns_cbranch_scc1 L_qwd\ns_sleep 4\ns_sub_u32 s8, s8, 12\ns_branch L_qw")
        a.label("L_qwd")
    if light:
        a(f"v_and_b32 v2, 31, v0\nv_lshlrev_b32 v2, 9, v2")
        a.label("L_lpoll")
        a(f"buffer_load_dwordx4 v[{WQ}:{WQ+3}], v2, s[52:55], s64 offen sc1\ns_sub_u32 s59, s59, 1\ns_waitcnt vmcnt(0)")
        a(f"v_cmp_ne_u64 vcc, s[10:11], v[{WQ+2}:{WQ+3}]\ns_cmp_eq_u32 s59, 0\ns_cbranch_scc1 L_qpoll\ns_cbranch_vccnz L_lpoll")
    if ql2:
        a.label("L_qpa")
        for r in range(4):
            for t in range(4): a(f"buffer_load_dwordx4 v[{WQ+16*r+4*t}:{WQ+16*r+4*t+3}], v152, s[52:55], s{64+r} offen offset:{1024*t} sc1")
        a("s_sub_u32 s59, s59, 1")
        for r in range(4):
            a(f"s_waitcnt vmcnt({12-4*r})")
            for t in range(4): a(f"v_cmpx_eq_u64 vcc, s[10:11], v[{WQ+16*r+4*t+2}:{WQ+16*r+4*t+3}]")
        a(f"s_cmp_eq_u64 exec, -1\ns_mov_b64 exec, -1\ns_cbranch_scc1 L_qdone\ns_cmp_lt_u32 s59, {bound - (ql2 >> 1)}\ns_cbranch_scc1 L_qpoll")
        if qs2: a(f"s_sleep {qs2}")
        a("s_branch L_qpa")
    a.label("L_qpoll")
    if ql2: pub_b()
    for r in range(4):
        for t in range(4): a(f"buffer_load_dwordx4 v[{WQ+16*r+4*t}:{WQ+16*r+4*t+3}], v1, s[52:55], s{64+r} offen offset:{1024*t} sc1")
    if ql2: pass
    elif fb and t0m: a(f"s_mov_b64 exec, 0xff\nbuffer_load_dwordx2 v[144:145], v142, s[52:55], s12 offen offset:8 sc1\ns_mov_b64 exec, -1")
    elif fb: a(f"buffer_load_dwordx2 v[144:145], v142, s[52:55], s12 offen offset:8 sc1")
    a("s_sub_u32 s59, s59, 1")
    for r in range(4):
        a(f"s_waitcnt vmcnt({12-4*r+(1 if fb and not ql2 else 0)})")
        for t in range(4):
            if fb: a(f"v_cmpx_eq_u32 vcc, s10, v{WQ+16*r+4*t+2}")
            else: a(f"v_cmpx_eq_u64 vcc, s[10:11], v[{WQ+16*r+4*t+2}:{WQ+16*r+4*t+3}]")
    if fb and not t0m: a("s_waitcnt vmcnt(0)\nv_cmpx_eq_u32 vcc, s10, v144")
    a("s_cmp_eq_u64 exec, -1\ns_mov_b64 exec, -1\ns_cbranch_scc1 L_qdone\ns_cmp_lt_i32 s59, 1\ns_cbranch_scc1 L_qdone")
    if qsleep: a(f"s_sleep {qsleep}")
    a("s_branch L_qpa" if ql2 else "s_branch L_qpoll")
    a.label("L_qdone")
    for t in range(4):
        for e in range(2):
            r = WQ + 4 * t + e
            a(f"v_add_f32 v{r}, v{r}, v{r+16}\nv_add_f32 v{r+32}, v{r+32}, v{r+48}")
    for t in range(4):
        for e in range(2):
            r = WQ + 4 * t + e
            a(f"v_add_f32 v{r}, v{r}, v{r+32}")
    for t in range(4): a(f"v_cvt_pk_bf16_f32 v{WQ+4*t}, v{WQ+4*t}, v{WQ+4*t+1}")
    for t in range(4): a(f"ds_write_b32 v3, v{WQ+4*t} offset:{256*t}")
    def t0use(cnt):
        a(f"s_waitcnt vmcnt({cnt})\nv_subrev_u32 v145, s70, v145\nv_cmp_eq_u32 vcc, s10, v144\nv_cndmask_b32 v145, 0, v145, vcc")
        op = "v_add_u32" if t0m == 1 else "v_min_i32"
        for m in ["quad_perm:[1,0,3,2]", "quad_perm:[2,3,0,1]", "row_half_mirror"]: a(f"{op} v145, v145, v145 {m} {DPP}")
        if t0m == 1: a("v_ashrrev_i32 v145, 3, v145")
        a("v_add_u32 v145, s70, v145")
        if qf: a("v_and_b32 v145, -2, v145")
        a("s_mov_b64 exec, 1\nds_write_b32 v143, v145\ns_mov_b64 exec, -1")
    if ql2:
        a("s_and_b32 s8, s70, -2\nv_mov_b32 v146, s8\nds_write_b32 v143, v146")
        a(f"s_mov_b64 exec, 0xff\nbuffer_load_dwordx2 v[144:145], v142, s[52:55], s12 offen sc1")
        pub_b()
        state["t0use"] = t0use
    elif fb and t0m: t0use(0)
    elif fb: a("ds_write_b32 v143, v145")
    a("s_waitcnt lgkmcnt(0)")
    stamp(4)
    if not qf: a("s_barrier")
    if ctl & 1: rank_issue(0)
    wo_block()
    stamp(5)
    if rc:
        a(f"v_mov_b32 v22, {L_PRG}\ns_mov_b32 s59, {bound*8}")
        a.label("L_rpoll")
        a(f"ds_read_b32 v21, v22 offset:{L_SMP-L_PRG}\ns_sub_u32 s59, s59, 1\ns_cmp_eq_u32 s59, 0\ns_cbranch_scc1 L_rdone\ns_waitcnt lgkmcnt(0)")
        a("v_cmp_eq_u32 vcc, -1, v21\ns_cbranch_vccz L_rgot\ns_sleep 4\ns_branch L_rpoll")
        a.label("L_rgot")
        a(f"v_mov_b32 v20, s14\nv_mul_u32_u24 v23, {rst}, v0\ns_mov_b32 s9, {WS_SM}\ns_cmp_ge_u32 s2, {8*rc}\ns_cbranch_scc1 L_rnop !nf")
        a(f"s_mul_i32 s8, s2, {rst}\ns_add_u32 s8, s8, {WS_SM}\nv_mov_b32 v24, 0\ns_mov_b64 exec, 1\nbuffer_store_dwordx2 v[20:21], v24, s[52:55], s8 offen sc1")
        a.raw("L_rnop:")
        a(f"s_mov_b64 exec, {hex((1 << (8*rc)) - 1)}\ns_mov_b32 s59, {rtry}\ns_sleep {rsl}")
        a.label("L_rs")
        a("buffer_load_dwordx2 v[24:25], v23, s[52:55], s9 offen sc1\ns_sub_u32 s59, s59, 1\ns_waitcnt vmcnt(0)\nv_cmp_ne_u32 vcc, v20, v24")
        a("s_cbranch_vccz L_rall\ns_cmp_eq_u32 s59, 0\ns_cbranch_scc1 L_rdone\ns_sleep 8\ns_branch L_rs")
        a.label("L_rall")
        a("v_sub_u32 v25, v25, v21")
        for m in ["quad_perm:[1,0,3,2]", "quad_perm:[2,3,0,1]", "row_half_mirror", "row_mirror"][:3 + (rc > 1)]: a(f"v_add_u32 v25, v25, v25 {m} {DPP}")
        if rc == 4: a("v_mov_b32 v24, v25\nv_permlane16_swap_b32 v25, v24\nv_add_u32 v25, v25, v24")
        a(f"v_ashrrev_i32 v25, {[0, 3, 4, 0, 5][rc]}, v25\nv_add_u32 v25, v25, v21\nv_add_u32 v25, {rb - state['thrS']}, v25\ns_mov_b64 exec, 1\nds_write_b32 v22, v25")
        a.label("L_rdone")
        a("s_mov_b64 exec, -1")
    a(f"v_and_b32 v10, 7, v0\nv_lshlrev_b32 v10, 4, v10\nv_add_u32 v11, {L_STAT}, v10\ns_mov_b32 s59, {bound*8}")
    a.label("L_spoll")
    a(f"ds_read_b128 v[{G0}:{G0+3}], v11\ns_sub_u32 s59, s59, 1\ns_cmp_eq_u32 s59, 0\ns_cbranch_scc1 L_sdone\ns_waitcnt lgkmcnt(0)")
    a(f"v_cmp_u_f32 vcc, v{G0}, v{G0+1}\nv_cmp_u_f32 s[8:9], v{G0+2}, v{G0+3}\ns_or_b64 vcc, vcc, s[8:9]\ns_cbranch_vccz L_sdone\ns_sleep 4\ns_branch L_spoll")
    a.label("L_sdone")
    a(f"s_waitcnt lgkmcnt(0)\nv_or_b32 v{G0}, v30, v{G0}\nv_or_b32 v{G0+2}, v30, v{G0+2}")
    if l2h1:
        a(f"s_getreg_b32 s9, hwreg(HW_REG_XCC_ID, 0, 4)\nv_mov_b32 v18, s9\nv_and_or_b32 v{G0+1}, v{G0+1}, -16, v18\nv_and_or_b32 v{G0+3}, v{G0+3}, -16, v18")
    a(f"s_mov_b64 exec, 0xff\nbuffer_store_dwordx4 v[{G0}:{G0+3}], v1, s[52:55], s56 offen sc1\ns_mov_b64 exec, -1")
    if ctl & 2:
        rank_issue(1); a("s_waitcnt vmcnt(1)"); rank_use()
    a("v_lshrrev_b32 v11, 3, v0\nv_xor_b32 v11, s5, v11\nv_lshl_add_u32 v10, v11, 7, v10")
    for j in range(1, 4): a(f"v_xor_b32 v{10+j}, {1024*j}, v10")
    a(f"s_lshl_b32 s8, s4, 12\ns_add_u32 s8, s8, {WS_ST}\ns_mov_b32 s59, {bound}\ns_mov_b32 s12, {hex(f2u(1.4426950408889634))}")
    SM = 48
    d = sdelay
    while d > 0:
        a(f"s_sleep {min(d, 127)}"); d -= 127
    a.label("L_gpoll")
    for j in range(4): a(f"buffer_load_dwordx4 v[{G0+4*j}:{G0+4*j+3}], v{10+j}, s[52:55], s8 offen sc1")
    a("s_sub_u32 s59, s59, 1\ns_waitcnt vmcnt(0)")
    for j in range(8): a(f"v_xor_b32 v{G0+2*j}, v30, v{G0+2*j}")
    a(f"v_or3_b32 v{SM}, v{G0}, v{G0+2}, v{G0+4}\nv_or3_b32 v{SM+1}, v{G0+6}, v{G0+8}, v{G0+10}")
    a(f"v_or3_b32 v{SM}, v{SM}, v{G0+12}, v{G0+14}\nv_or_b32 v{SM}, v{SM}, v{SM+1}\nv_lshlrev_b32 v{SM}, 16, v{SM}")
    a(f"v_cmp_ne_u32 vcc, 0, v{SM}\ns_cmp_eq_u32 s59, 0\ns_cbranch_scc1 L_gdone\ns_cbranch_vccz L_gdone\ns_sleep {ssleep}\ns_branch L_gpoll")
    a.label("L_gdone")
    if l2h1:
        for j in range(8): a(f"v_xor_b32 v{G0+2*j+1}, v18, v{G0+2*j+1}")
        a(f"v_or3_b32 v{SM}, v{G0+1}, v{G0+3}, v{G0+5}\nv_or3_b32 v{SM+1}, v{G0+7}, v{G0+9}, v{G0+11}")
        a(f"v_or3_b32 v{SM}, v{SM}, v{G0+13}, v{G0+15}\nv_or_b32 v{SM}, v{SM}, v{SM+1}\nv_and_b32 v{SM}, 15, v{SM}")
        a(f"v_cmp_ne_u32 s[28:29], 0, v{SM}")
        for j in range(8): a(f"v_and_b32 v{G0+2*j+1}, -16, v{G0+2*j+1}")
    for k in range(2):
        a(f"v_max3_f32 v{SM+k}, v{G0+2*k}, v{G0+4+2*k}, v{G0+8+2*k}\nv_max_f32 v{SM+k}, v{SM+k}, v{G0+12+2*k}")
    allred2("v_max_f32", SM, SM + 1, SM + 4, SM + 5, [1, 2, 3, 4, 5])
    for j in range(4):
        for k in range(2):
            r = G0 + 4 * j + 2 * k
            a(f"v_sub_f32 v{r}, v{r}, v{SM+k}\nv_mul_f32 v{r}, s12, v{r}\nv_exp_f32 v{r}, v{r}")
    for k in range(2):
        a(f"v_mul_f32 v{SM+2+k}, v{G0+2*k}, v{G0+2*k+1}")
        for j in range(1, 4): a(f"v_fmac_f32 v{SM+2+k}, v{G0+4*j+2*k}, v{G0+4*j+2*k+1}")
    allred2("v_add_f32", SM + 2, SM + 3, SM + 4, SM + 5, [1, 2, 3, 4, 5])
    a(f"v_rcp_f32 v{SM+2}, v{SM+2}\nv_rcp_f32 v{SM+3}, v{SM+3}")
    a(f"v_mul_f32 v{SM}, v{G0}, v{SM+2}\nv_mul_f32 v{SM+1}, v{G0+2}, v{SM+3}")
    FS = 86
    for w in range(4):
        for h in range(4): a(f"v_readlane_b32 s{FS+4*w+h}, v{SM+(h&1)}, {2*w+(h>>1)}")
    stamp(6)
    if pre and prt:
        if pry < 32: a(f"s_cmp_ge_u32 s5, {pry}\ns_cbranch_scc1 L_nopf !nf")
        a(f"s_getpc_b64 s[60:61]")
        a.raw(f"L_pc_t:")
        a(f"v_lshlrev_b32 v228, 7, v0\nv_min_u32 v224, L_code_end-L_pc_t-132, v228\nv_and_b32 v224, -4, v224\nv_mov_b32 v225, s61\nv_add_co_u32 v224, vcc, s60, v224\nv_addc_co_u32 v225, vcc, 0, v225, vcc")
        a(f"global_load_dword v226, v[224:225], off")
        if prt > 1:
            a(f"s_sub_u32 s60, s60, L_pc_t-L_ctrl+{prt}\ns_subb_u32 s61, s61, 0\nv_min_u32 v224, {prt}, v228\nv_mov_b32 v225, s61\nv_add_co_u32 v224, vcc, s60, v224\nv_addc_co_u32 v225, vcc, 0, v225, vcc")
            a(f"global_load_dword v226, v[224:225], off")
        if pry < 32: a.raw("L_nopf:")
    elif pre:
        prefetch_code("b", NPF)
    if ctl & 4:
        a(f"v_mov_b32 v22, {L_PRG}\ns_mov_b32 s59, {bound*8}")
        a.label("L_ppoll")
        a("ds_read_b32 v21, v22\ns_sub_u32 s59, s59, 1\ns_cmp_eq_u32 s59, 0\ns_cbranch_scc1 L_pdone\ns_waitcnt lgkmcnt(0)")
        a("v_cmp_eq_u32 vcc, -1, v21\ns_cbranch_vccz L_pdone\ns_sleep 4\ns_branch L_ppoll")
        a.label("L_pdone")
        rank_issue(2); a("s_waitcnt vmcnt(1)"); rank_use()
    a(f"v_bfe_u32 v10, v0, 2, 3\nv_mul_u32_u24 v10, {S1}, v10\nv_lshrrev_b32 v11, 5, v0\nv_lshl_add_u32 v10, v11, 6, v10\nv_and_b32 v11, 3, v0\nv_lshl_add_u32 v10, v11, 4, v10")
    a(f"s_mul_i32 s8, s4, {32*S1}\ns_lshr_b32 s9, s5, 1\ns_lshl_b32 s9, s9, 7\ns_add_u32 s8, s8, s9\ns_add_u32 s64, s8, {WS_H1}")
    for j in range(1, 4): a(f"s_add_u32 s{64+j}, s64, {8*S1*j}")
    if h2t:
        a(f"v_lshrrev_b32 v17, 1, v0\nv_mul_u32_u24 v17, {S2}, v17\nv_lshl_add_u32 v17, v4, 4, v17\nv_lshrrev_b32 v11, 1, v0\nv_lshlrev_b32 v11, {h2s}, v11\nv_lshl_add_u32 v11, v4, 4, v11")
        a(f"s_and_b32 s8, s2, 63\ns_mul_i32 s8, s8, {S2}\ns_add_u32 s24, s8, {WS_H2}")
        for j in range(1, 4): a(f"s_add_u32 s{24+j}, s24, {(32 << h2s)*j}")
    else:
        a("v_lshrrev_b32 v11, 1, v0\nv_lshlrev_b32 v11, 10, v11\nv_lshl_add_u32 v11, v4, 4, v11")
        a(f"s_lshr_b32 s8, s2, 5\ns_lshl_b32 s8, s8, 17\ns_bfe_u32 s9, s2, 0x10004\ns_lshl_b32 s9, s9, 9\ns_add_u32 s8, s8, s9")
        a(f"s_and_b32 s9, s2, 15\ns_lshl_b32 s9, s9, 5\ns_add_u32 s8, s8, s9\ns_add_u32 s24, s8, {WS_H2}")
        for j in range(1, 4): a(f"s_add_u32 s{24+j}, s24, {32768*j}")
    if h3:
        a(f"v_and_b32 v11, 15, v0\nv_mul_u32_u24 v11, {2*SA}, v11\nv_lshrrev_b32 v17, 4, v0\nv_lshl_add_u32 v11, v17, 4, v11")
        a(f"s_lshl_b32 s8, s4, 5\ns_and_b32 s9, s5, 1\ns_add_u32 s8, s8, s9\ns_mul_i32 s8, s8, {SA}\ns_lshr_b32 s9, s5, 1\ns_lshl_b32 s9, s9, 6\ns_add_u32 s8, s8, s9\ns_add_u32 s24, s8, {WS_2A}")
        if h3 == 1: a(f"v_lshrrev_b32 v19, 1, v17\nv_mul_u32_u24 v19, {SB}, v19\nv_and_b32 v17, 1, v17\nv_lshl_add_u32 v19, v17, 4, v19")
        else: a(f"v_mul_u32_u24 v19, {SB}, v17")
        if gate: a(f"v_mov_b32 v16, {L_LVL}")
        if pq:
            a(f"v_mov_b32 v22, {L_SMP}\ns_mov_b32 s59, {bound*8}")
            a.label("L_ppoll")
            a("ds_read_b32 v21, v22\ns_sub_u32 s59, s59, 1\ns_cbranch_scc1 L_pdone\ns_waitcnt lgkmcnt(0)")
            a("v_cmp_eq_u32 vcc, -1, v21\ns_cbranch_vccz L_pdone\ns_sleep 2\ns_branch L_ppoll")
            a.label("L_pdone")
        if pt & 1: a(f"buffer_load_dwordx4 v[96:99], v11, s[52:55], s24 offen sc1")
        if pt & 2:
            for j in range(4): a(f"buffer_load_dword v{104+j}, v10, s[52:55], s{64+j} offen sc1")
        a(f"s_and_b32 s8, s5, 1\ns_lshl_b32 s8, s8, 5\ns_and_b32 s9, s5, 30\ns_add_u32 s8, s8, s9\ns_lshl_b32 s8, s8, {h3-1}\ns_mul_i32 s8, s8, {SB}\ns_lshl_b32 s9, s4, {h2s}\ns_add_u32 s8, s8, s9\ns_add_u32 s25, s8, {WS_2B}")
    if pd:
        a("s_cmp_eq_u64 s[28:29], 0\ns_cbranch_scc0 L_nopd !nf")
        for e in range(4): a(f"v_xor_b32 v{100+e}, 0x55, v31")
        if pd & 1: a("buffer_store_dwordx4 v[100:103], v1, s[52:55], s57 offen\nbuffer_store_dwordx4 v[100:103], v1, s[52:55], s57 offen offset:1024")
        if pd & 2: a("buffer_store_dwordx4 v[100:103], v1, s[52:55], s58 offen")
        a.raw("L_nopd:")
    a(f"v_add_u32 v12, {2*RING}, v1\ns_mov_b32 s15, 0xffffff00")
    if dual: a(f"v_add_u32 v14, {DUAL}, v1\nv_add_u32 v15, {DUAL}, v10\nv_mov_b32 v16, v15")
    a(f"s_mov_b32 s48, s36\ns_mov_b32 s49, s37\ns_mov_b32 s50, 1028\ns_mov_b32 s59, {bound}\ns_waitcnt vmcnt(0)")
    a("s_barrier")
    stamp(7)
    XA = 192
    for hf in range(2):
        for w in range(4):
            a(f"ds_read_b128 v[{XA+16*hf+4*w}:{XA+16*hf+4*w+3}], v{1 if w < 2 else 12} offset:{(w&1)*RING + 1024*hf}")
    a("ds_read_b32 v13, v8")
    for hf in range(2):
        x = XA + 16 * hf
        for w in range(4):
            a(f"s_waitcnt lgkmcnt({8 - 4*hf - w})")
            for h in range(4):
                if w == 0: a(f"v_mul_f32 v{x+h}, s{FS+h}, v{x+h}")
                else: a(f"v_fmac_f32 v{x+h}, s{FS+4*w+h}, v{x+4*w+h}")
        for h in range(1 if t16 else 4): a(f"v_and_or_b32 v{x+h}, v{x+h}, s15, v31")
        if dual: a(f"buffer_store_dwordx4 v[{x}:{x+3}], v14, s[52:55], s57 offen offset:{1024*hf}")
        if l2h1:
            a(f"s_cmp_eq_u64 s[28:29], 0\ns_cbranch_scc1 L_pl{hf} !nf")
            a(f"buffer_store_dwordx4 v[{x}:{x+3}], v1, s[52:55], s57 offen offset:{1024*hf} sc1\ns_branch L_pd{hf} !nf")
            a.raw(f"L_pl{hf}:")
            a(f"buffer_store_dwordx4 v[{x}:{x+3}], v1, s[52:55], s57 offen offset:{1024*hf}")
            a.raw(f"L_pd{hf}:")
        else:
            a(f"buffer_store_dwordx4 v[{x}:{x+3}], v1, s[52:55], s57 offen offset:{1024*hf} sc1")
    stamp(8)
    def gather(sets, Rr, C, va, sb, lab, slp, pst, pick=None, sp=0):
        n = len(sets)
        def issue(G):
            for j in range(4): a(f"buffer_load_dwordx4 v[{G+4*j}:{G+4*j+3}], v{va}, s[52:55], s{sb+j} offen sc1")
            if pick: pick()
        for k in range(n - 1):
            issue(sets[k]); a(f"s_sleep {pst}")
        a.label(f"{lab}poll")
        for k in range(n):
            issue(sets[(k + n - 1) % n])
            G = sets[k]
            if k == 0: a("s_sub_u32 s59, s59, 1")
            if t16:
                a(f"s_waitcnt vmcnt({4*(n-1)+2})\nv_xor_b32 v{G}, v31, v{G}\nv_xor_b32 v{G+4}, v31, v{G+4}\nv_or_b32 v{C}, v{G}, v{G+4}")
                for e in range(4): a(f"v_add_f32 v{G+e}, v{G+e}, v{G+4+e}")
                a(f"s_waitcnt vmcnt({4*(n-1)})\nv_xor_b32 v{G+8}, v31, v{G+8}\nv_xor_b32 v{G+12}, v31, v{G+12}\nv_or3_b32 v{C}, v{C}, v{G+8}, v{G+12}")
                a(f"v_add_f32 v{G+9}, v{G+9}, v{G+13}\nv_lshlrev_b32 v{C}, 24, v{C}\nv_add_f32 v{G+10}, v{G+10}, v{G+14}\nv_cmp_ne_u32 vcc, 0, v{C}")
                a(f"v_add_f32 v{G+11}, v{G+11}, v{G+15}\nv_add_f32 v{G+8}, v{G+8}, v{G+12}")
                for e in (1, 2, 3, 0): a(f"v_add_f32 v{Rr+e}, v{G+e}, v{G+8+e}")
                if k < n - 1:
                    a(f"s_cbranch_vccz {lab}done !nf")
                    if sp: a(f"s_sleep {sp}")
                elif slp: a(f"s_cmp_eq_u32 s59, 0\ns_cbranch_scc1 {lab}done !nf\ns_cbranch_vccz {lab}done !nf\ns_sleep {slp}\ns_branch {lab}poll !nf")
                else: a(f"s_cmp_eq_u32 s59, 0\ns_cbranch_scc1 {lab}done !nf\ns_cbranch_vccnz {lab}poll !nf")
                continue
            a(f"s_waitcnt vmcnt({4*(n-1)+2})")
            for i in range(8): a(f"v_xor_b32 v{G+i}, v31, v{G+i}")
            a(f"v_or3_b32 v{C}, v{G}, v{G+1}, v{G+2}\nv_or3_b32 v{C+1}, v{G+3}, v{G+4}, v{G+5}\nv_or3_b32 v{C}, v{C}, v{G+6}, v{G+7}")
            for e in range(4): a(f"v_add_f32 v{G+e}, v{G+e}, v{G+4+e}")
            a(f"s_waitcnt vmcnt({4*(n-1)})")
            for i in range(8, 16): a(f"v_xor_b32 v{G+i}, v31, v{G+i}")
            a(f"v_or3_b32 v{C}, v{C}, v{G+8}, v{G+9}\nv_or3_b32 v{C+1}, v{C+1}, v{G+10}, v{G+11}")
            a(f"v_or3_b32 v{C}, v{C}, v{G+12}, v{G+13}\nv_or3_b32 v{C+1}, v{C+1}, v{G+14}, v{G+15}")
            for e in range(4): a(f"v_add_f32 v{G+8+e}, v{G+8+e}, v{G+12+e}")
            a(f"v_or_b32 v{C}, v{C}, v{C+1}\nv_lshlrev_b32 v{C}, 24, v{C}\nv_cmp_ne_u32 vcc, 0, v{C}")
            for e in range(4): a(f"v_add_f32 v{Rr+e}, v{G+e}, v{G+8+e}")
            if k < n - 1:
                a(f"s_cbranch_vccz {lab}done !nf")
                if sp: a(f"s_sleep {sp}")
            elif slp: a(f"s_cmp_eq_u32 s59, 0\ns_cbranch_scc1 {lab}done !nf\ns_cbranch_vccz {lab}done !nf\ns_sleep {slp}\ns_branch {lab}poll !nf")
            else: a(f"s_cmp_eq_u32 s59, 0\ns_cbranch_scc1 {lab}done !nf\ns_cbranch_vccnz {lab}poll !nf")
        a.raw(f"{lab}done:")
    def pick():
        a(f"s_and_b32 s8, s59, {dual-1}\ns_cselect_b32 s8, {DUAL}, 0\nv_add_u32 v16, s8, v10")
    G0 = 56
    gather([32, 224, 240, 192, 208, 96][:n1], G0, 60, 16 if dual else 10, 64, "L_h1", h1sleep, pst1, pick if dual else None, sp1)
    if stamps > 1: stamp(14)
    a(f"v_permlane16_swap_b32 v{G0}, v{G0+2}\nv_permlane16_swap_b32 v{G0+1}, v{G0+3}")
    a(f"v_add_f32 v{G0}, v{G0}, v{G0+2}\nv_add_f32 v{G0+1}, v{G0+1}, v{G0+3}")
    allred2("v_add_f32", G0, G0 + 1, 0, 0, [2, 3])
    AO = 48
    a(f"v_cvt_pk_bf16_f32 v{AO}, v{G0}, v{G0+1}\nv_mov_b32 v{AO+1}, v{AO}\nv_permlane16_swap_b32 v{AO}, v{AO+1}")
    for i in range(1, 4):
        a(f"v_mov_b32 v{AO+2*i}, v{AO} quad_perm:[{i},{i},{i},{i}] {DPP}\nv_mov_b32 v{AO+2*i+1}, v{AO+1} quad_perm:[{i},{i},{i},{i}] {DPP}")
    D = 64
    for q in range(4):
        for e in range(8):
            c = "0" if q == 0 else f"v[{D+4*e}:{D+4*e+3}]"
            b = BW + 16 * q + 2 * e
            a(f"v_mfma_f32_4x4x4_16b_bf16 v[{D+4*e}:{D+4*e+3}], v[{AO+2*q}:{AO+2*q+1}], v[{b}:{b+1}], {c} cbsz:3 abid:0")
    for e in range(4): a(f"v_permlane32_swap_b32 v{D+4*e}, v{D+4*e+16}")
    for e in range(4): a(f"v_add_f32 v{G0+e}, v{D+4*e}, v{D+4*e+16}")
    for e in range(1 if t16 else 4): a(f"v_and_or_b32 v{G0+e}, v{G0+e}, s15, v31")
    if h3:
        if l2h1:
            a(f"s_cmp_eq_u64 s[28:29], 0\ns_cbranch_scc1 L_pl2 !nf")
            a(f"buffer_store_dwordx4 v[{G0}:{G0+3}], v1, s[52:55], s58 offen sc1\ns_branch L_pd2 !nf")
            a.raw("L_pl2:")
            a(f"buffer_store_dwordx4 v[{G0}:{G0+3}], v1, s[52:55], s58 offen")
            a.raw("L_pd2:")
        else:
            a(f"buffer_store_dwordx4 v[{G0}:{G0+3}], v1, s[52:55], s58 offen sc1")
        stamp(9)
        GA = 96
        a(f"s_mov_b32 s59, {bound}")
        sets = [96, 104, 108, 112][:na]
        def iss(G): a(f"buffer_load_dwordx4 v[{G}:{G+3}], v11, s[52:55], s24 offen sc1")
        for k in range(na - 1):
            iss(sets[k]); a(f"s_sleep {spa}")
        a.label("L_2apoll")
        for k in range(na):
            G = sets[k]
            iss(sets[(k + na - 1) % na])
            if k == 0: a("s_sub_u32 s59, s59, 1")
            a(f"s_waitcnt vmcnt({na-1})")
            if t16:
                a(f"v_xor_b32 v{G}, v31, v{G}")
                for e in (1, 2, 3): a(f"v_add_f32 v{GA+4+e}, v{G+e}, v{G+e} quad_perm:[1,0,3,2] {DPP}")
                a(f"v_lshlrev_b32 v60, 24, v{G}\nv_add_f32 v{GA+4}, v{G}, v{G} quad_perm:[1,0,3,2] {DPP}\nv_cmp_ne_u32 vcc, 0, v60")
            else:
                for e in range(4): a(f"v_xor_b32 v{G+e}, v31, v{G+e}")
                a(f"v_or3_b32 v60, v{G}, v{G+1}, v{G+2}")
                for e in range(4): a(f"v_add_f32 v{GA+4+e}, v{G+e}, v{G+e} quad_perm:[1,0,3,2] {DPP}")
                a(f"v_or_b32 v60, v60, v{G+3}\nv_lshlrev_b32 v60, 24, v60\nv_cmp_ne_u32 vcc, 0, v60")
            for e in range(4): a(f"v_add_f32 v{GA+4+e}, v{GA+4+e}, v{GA+4+e} quad_perm:[2,3,0,1] {DPP}")
            if k < na - 1: a("s_cbranch_vccz L_2adone !nf")
            else: a("s_cmp_eq_u32 s59, 0\ns_cbranch_scc1 L_2adone !nf\ns_cbranch_vccnz L_2apoll !nf")
        a.raw("L_2adone:")
        for m in ["row_ror:4", "row_ror:8"]:
            for e in range(4): a(f"v_add_f32 v{GA+4+e}, v{GA+4+e}, v{GA+4+e} {m} {DPP}")
        for e in range(4): a(f"v_and_or_b32 v{GA+4+e}, v{GA+4+e}, s15, v31")
        a(f"s_mov_b32 exec_lo, 0x00010001\ns_mov_b32 exec_hi, 0x00010001\nbuffer_store_dwordx4 v[{GA+4}:{GA+7}], v19, s[52:55], s25 offen sc1")
        if gate: a("ds_write_b32 v16, v16")
        if stamps:
            a("s_mov_b64 exec, -1"); stamp(15); a("s_sleep 64")
            a(f"s_lshl_b32 s68, s2, 7\ns_add_u32 s68, s68, {WS_DBG}\ns_mov_b64 exec, 1\nv_mov_b32 v1, 0")
            for k in range(16):
                if k != 10: a(f"v_mov_b32 v2, s{70+k}\nbuffer_store_dword v2, v1, s[52:55], s68 offen offset:{4*k}")
            a(f"s_cmp_lt_u32 s2, {NFIN}\ns_cbranch_scc1 L_end\nbuffer_store_dword v2, v1, s[52:55], s68 offen offset:40")
        if n1 > 1 or na > 1: a("s_waitcnt vmcnt(0)")
        if gate: a("s_waitcnt lgkmcnt(0)")
        a("s_endpgm")
    else:
        a(f"buffer_store_dwordx4 v[{G0}:{G0+3}], v{17 if h2t else 1}, s[52:55], s58 offen sc1")
        stamp(9)
        a(f"s_cmp_ge_u32 s2, {NFIN}\ns_cbranch_scc1 L_fin !nf\ns_mov_b32 s59, {bound}\ns_waitcnt lgkmcnt(0)")
        G1 = 48
        if h2d: a(f"s_sleep {h2d}")
        gather([112, 128, 144, 160, 176, 96][:n2], G1, 60, 11, 24, "L_h2", h2sleep, pst2, None, sp2)
        if stamps > 1: stamp(15)
        a(f"v_permlane32_swap_b32 v{G1}, v{G1+2}\nv_permlane32_swap_b32 v{G1+1}, v{G1+3}")
        a(f"v_add_f32 v{G1}, v{G1}, v{G1+2}\nv_add_f32 v{G1+1}, v{G1+1}, v{G1+3}")
        a(f"v_permlane16_swap_b32 v{G1}, v{G1+1}\nv_add_f32 v{G1}, v{G1}, v{G1+1}")
        allred("v_add_f32", G1, 0, [3, 2, 1])
        a(f"v_cvt_pk_bf16_f32 v{G1}, v{G1}, v{G1}\nv_lshlrev_b32 v{G1}, 16, v{G1}\nv_add_f32 v{G1}, v9, v{G1}")
        a(f"v_cvt_pk_bf16_f32 v{G1}, v{G1}, v{G1}\nv_lshlrev_b32 v{G1}, 16, v{G1}\nv_add_f32 v{G1}, v13, v{G1}")
        a(f"v_cvt_pk_bf16_f32 v{G1}, v{G1}, v{G1}")
        a(f"s_mov_b32 exec_lo, 0x00030003\ns_mov_b32 exec_hi, 0x00030003\nbuffer_store_short v{G1}, v7, s[48:51], s62 offen" + (" sc1" if outsc else ""))
        a("s_cmp_lg_u32 s2, 0\ns_cbranch_scc1 L_fin !nf")
        a("s_mov_b64 exec, 1\nv_mov_b32 v2, s14\nv_mov_b32 v3, 0\nbuffer_store_dword v2, v3, s[52:55], 0 offen" + (" sc1" if outsc else ""))
    a.label("L_fin")
    if spin:
        a.label("L_spin")
        a(f"s_memrealtime s[42:43]\ns_waitcnt lgkmcnt(0)\ns_sub_u32 s42, s42, s70\ns_cmp_lt_u32 s42, {spin}\ns_cbranch_scc1 L_spin")
    if stamps:
        a("s_mov_b64 exec, -1")
        stamp(10)
        stamp_flush(0, 16, "s[52:55]")
    if n1 > 1 or n2 > 1: a("s_waitcnt vmcnt(0)")
    a("s_endpgm")

    a.label("L_bwave")
    if ka == 1: a(f"s_cmp_ge_u32 s2, {NFIN}\ns_cbranch_scc1 L_end\n" + REST)
    if vt:
        if vt & 8: a("s_barrier")
        if vsl: a(f"s_sleep {vsl}")
        a(f"s_lshl_b32 s7, s4, 23\ns_lshl_b32 s8, s5, {shy}\ns_add_u32 s7, s7, s8\nv_lshlrev_b32 v4, 16, v0\nv_lshlrev_b32 v5, 17, v0")
        a("s_lshl_b32 s8, s4, 19\ns_lshr_b32 s9, s5, 1\ns_lshl_b32 s9, s9, 13\ns_add_u32 s8, s8, s9\ns_waitcnt lgkmcnt(0)")
        srd(44, 18, 0x4000000); srd(48, 20, 0x4000000); srd(52, 24, 0x400000)
        a(f"s_mov_b64 exec, {15 if vt & 16 else 1}")
        if vt & 1: a("buffer_load_dword v6, v4, s[48:51], s7 offen nt")
        if vt & 2: a("buffer_load_dword v7, v5, s[52:55], s8 offen nt")
        if vt & 4: a("buffer_load_dword v8, v4, s[44:47], s7 offen nt")
        a("s_mov_b64 exec, -1")
        if not vt & 8: a("s_barrier")
        a(f"s_setprio {bprio}\ns_waitcnt vmcnt(0)\ns_cmp_ge_u32 s2, {NFIN}\ns_cbranch_scc1 L_end")
    else:
        a(f"s_cmp_ge_u32 s2, {NFIN}\ns_cbranch_scc1 {'L_pf' if ps else 'L_end'}")
        a(f"s_setprio {bprio}\ns_barrier")
    if qf:
        if ql2:
            a("s_cmp_ge_u32 s2, 8\ns_cbranch_scc1 L_bt0 !nf\ns_waitcnt lgkmcnt(0)\ns_load_dword s14, s[40:41], 0")
            srd(64, 40, WS_NUM)
            a(f"s_lshl_b32 s8, s2, 7\ns_add_u32 s8, s8, {WS_RK}\nv_mov_b32 v3, 0\nv_mov_b32 v29, s70\ns_waitcnt lgkmcnt(0)\ns_add_u32 s14, s14, 1\nv_mov_b32 v28, s14")
            a("s_mov_b64 exec, 1\nbuffer_store_dwordx2 v[28:29], v3, s[64:67], s8 offen sc1\ns_mov_b64 exec, -1\ns_waitcnt vmcnt(0)")
            a.label("L_bt0")
        if om:
            a("s_and_b32 s8, s2, 4\ns_lshl_b32 s8, s8, 4\ns_and_b32 s9, s2, 3\ns_lshl_b32 s9, s9, 3\ns_or_b32 s8, s8, s9")
            a("s_bfe_u32 s9, s2, 0x30003\ns_or_b32 s8, s8, s9\ns_lshr_b32 s9, s2, 6\ns_lshl_b32 s9, s9, 5\ns_or_b32 s2, s8, s9")
        a(f"v_mov_b32 v28, {L_PRG}\ns_mov_b32 s14, {bound*8}")
        a.label("L_bqf")
        a("s_sleep 8\nds_read_b32 v29, v28\ns_sub_u32 s14, s14, 1\ns_cbranch_scc1 L_bqfd\ns_waitcnt lgkmcnt(0)\nv_readfirstlane_b32 s13, v29\ns_cmp_eq_u32 s13, -1\ns_cbranch_scc1 L_bqf")
        a.label("L_bqfd")
    W1, B1, W2, PW = 32, 64, 96, 112
    a("s_waitcnt lgkmcnt(0)")
    if h3: a("s_load_dword s14, s[40:41], 0")
    srd(44, 16, 1024); srd(48, 28, 3584); srd(52, 30, 3584); srd(56, 32, 3584); srd(60, 34, 4)
    a("v_lshlrev_b32 v1, 4, v0\nv_lshlrev_b32 v2, 3, v0\nv_mov_b32 v3, 0")
    a(f"buffer_load_dwordx4 v[{XR}:{XR+3}], v1, s[44:47], 0 offen")
    a("buffer_load_ushort v31, v3, s[60:63], 0 offen")
    for k in range(7):
        a(f"buffer_load_dwordx2 v[{PW+2*k}:{PW+2*k+1}], v2, s[48:51], 0 offen offset:{512*k}")
        a(f"buffer_load_dwordx2 v[{PW+14+2*k}:{PW+15+2*k}], v2, s[52:55], 0 offen offset:{512*k}")
        a(f"buffer_load_dwordx2 v[{W2+2*k}:{W2+2*k+1}], v2, s[56:59], 0 offen offset:{512*k}")
    a("s_waitcnt vmcnt(22)")
    ln8(XR, F, XN, T)
    ln8(XN, F, XR, T)
    for i in range(4): a(f"v_lshlrev_b32 v{F+2*i}, 16, v{XR+i}\nv_and_b32 v{F+2*i+1}, s6, v{XR+i}")
    if h3 == 2:
        a("s_mov_b32 s7, 0\ns_lshr_b32 s8, s2, 6\ns_lshl_b32 s8, s8, 5\ns_and_b32 s9, s2, 31\ns_add_u32 s8, s8, s9")
    else:
        a("s_sub_u32 s7, s3, 5\ns_lshr_b32 s8, s2, 5\ns_lshl_b32 s8, s8, 5\ns_and_b32 s9, s2, 15\ns_lshl_b32 s9, s9, 1\ns_add_u32 s8, s8, s9\ns_add_u32 s8, s8, s7")
    for i in range(8): a(f"v_readlane_b32 s{64+i}, v{F+i}, s8")
    a(f"s_bitcmp1_b32 s2, {5 if h3 == 2 else 4}")
    for e in range(4): a(f"s_cselect_b32 s{64+e}, s{68+e}, s{64+e}")
    a("s_waitcnt vmcnt(0)")
    for k in range(14):
        a(f"v_lshlrev_b32 v{W1+2*k}, 16, v{PW+k}\nv_and_b32 v{W1+2*k+1}, s6, v{PW+k}")
        a(f"v_lshlrev_b32 v{B1+2*k}, 16, v{PW+14+k}\nv_and_b32 v{B1+2*k+1}, s6, v{PW+14+k}")
    a("v_lshlrev_b32 v31, 16, v31")
    k1 = -2.0 * 1.4426950408889634 * 0.7978845608028654
    a(f"s_mov_b32 s10, {hex(f2u(k1 * 0.044715))}\nv_mov_b32 v30, {hex(f2u(k1))}")
    a(f"s_lshl_b32 s7, s7, 4\ns_add_u32 s7, s7, {L_Y}\nv_mov_b32 v29, s7\ns_mov_b32 s11, 4")
    a.label("L_bcol")
    U, Z = 8, 16
    a("v_mov_b32 v28, 0")
    for k0 in range(0, 14, 2):
        ks = (k0, k0 + 1)
        for n, k in enumerate(ks): a(f"v_mul_f32 v{U+2*n}, s64, v{W1+2*k}\nv_mul_f32 v{U+2*n+1}, s64, v{W1+2*k+1}")
        for n, k in enumerate(ks): a(f"v_cvt_pk_bf16_f32 v{Z+n}, v{U+2*n}, v{U+2*n+1}")
        for n, k in enumerate(ks): a(f"v_lshlrev_b32 v{U+2*n}, 16, v{Z+n}\nv_and_b32 v{U+2*n+1}, s6, v{Z+n}")
        for n, k in enumerate(ks): a(f"v_add_f32 v{U+2*n}, v{U+2*n}, v{B1+2*k}\nv_add_f32 v{U+2*n+1}, v{U+2*n+1}, v{B1+2*k+1}")
        for n, k in enumerate(ks): a(f"v_cvt_pk_bf16_f32 v{Z+n}, v{U+2*n}, v{U+2*n+1}")
        for n, k in enumerate(ks): a(f"v_lshlrev_b32 v{U+2*n}, 16, v{Z+n}\nv_and_b32 v{U+2*n+1}, s6, v{Z+n}")
        for i in range(4): a(f"v_mul_f32 v{Z+i}, v{U+i}, v{U+i}")
        for i in range(4): a(f"v_fma_f32 v{Z+i}, v{Z+i}, s10, v30")
        for i in range(4): a(f"v_mul_f32 v{Z+i}, v{Z+i}, v{U+i}")
        for i in range(4): a(f"v_exp_f32 v{Z+i}, v{Z+i}")
        for i in range(4): a(f"v_add_f32 v{Z+i}, 1.0, v{Z+i}")
        for i in range(4): a(f"v_rcp_f32 v{Z+i}, v{Z+i}")
        for i in range(4): a(f"v_mul_f32 v{U+i}, v{U+i}, v{Z+i}")
        for n, k in enumerate(ks): a(f"v_cvt_pk_bf16_f32 v{Z+n}, v{U+2*n}, v{U+2*n+1}")
        for n, k in enumerate(ks): a(f"v_dot2c_f32_bf16 v28, v{Z+n}, v{W2+k}")
    allred("v_add_f32", 28, 27, range(6))
    a("v_cvt_pk_bf16_f32 v28, v28, v28\nv_lshlrev_b32 v28, 16, v28\nv_add_f32 v28, v28, v31")
    a("v_cvt_pk_bf16_f32 v28, v28, v28\nv_lshlrev_b32 v28, 16, v28")
    a("s_mov_b64 exec, 1\nds_write_b32 v29, v28\ns_mov_b64 exec, -1\nv_add_u32 v29, 4, v29")
    a("s_mov_b32 s64, s65\ns_mov_b32 s65, s66\ns_mov_b32 s66, s67")
    a("s_sub_u32 s11, s11, 1\ns_cmp_lg_u32 s11, 0\ns_cbranch_scc1 L_bcol")
    a("s_waitcnt lgkmcnt(0)")
    if h3:
        a.comment("wave 5 of the first workgroups: last sum over the eight head groups, residual adds, output")
        if h3 == 1:
            a("s_cmp_eq_u32 s3, 6\ns_cbranch_scc1 L_end")
            a("s_lshr_b32 s8, s2, 5\ns_and_b32 s8, s8, 1\ns_lshl_b32 s62, s8, 8")
            a("s_and_b32 s9, s2, 15\ns_lshl_b32 s9, s9, 4\ns_add_u32 s62, s62, s9")
            a("s_lshr_b32 s9, s2, 4\ns_and_b32 s9, s9, 1\ns_lshl_b32 s9, s9, 2\ns_add_u32 s62, s62, s9\ns_lshl_b32 s62, s62, 1")
            a("v_lshrrev_b32 v4, 5, v0\nv_bfe_u32 v5, v0, 3, 2\nv_lshl_add_u32 v7, v4, 3, v5\nv_lshlrev_b32 v7, 1, v7")
            a(f"v_lshl_add_u32 v8, v4, 2, v5\nv_lshlrev_b32 v8, 2, v8\nv_add_u32 v8, {L_Y}, v8")
        else:
            a("s_lshl_b32 s62, s8, 3\ns_lshr_b32 s9, s2, 5\ns_and_b32 s9, s9, 1\ns_lshl_b32 s9, s9, 2\ns_add_u32 s62, s62, s9\ns_lshl_b32 s62, s62, 1")
            a(f"v_bfe_u32 v5, v0, 3, 2\nv_lshlrev_b32 v7, 1, v5\nv_lshlrev_b32 v8, 2, v5\nv_add_u32 v8, {L_Y}, v8")
        a("buffer_load_ushort v9, v7, s[44:47], s62 offen")
        srd(52, 40, WS_NUM); srd(48, 36, 1024)
        a(f"v_and_b32 v20, 7, v0\nv_lshlrev_b32 v20, {h2s}, v20\nv_bfe_u32 v21, v0, 3, {3 if h3 == 1 else 2}\nv_lshl_add_u32 v20, v21, 2, v20")
        a(f"s_mul_i32 s26, s2, {SB}\ns_add_u32 s26, s26, {WS_2B}\ns_add_u32 s14, s14, 1\ns_and_b32 s15, s14, 0xff\nv_mov_b32 v33, s15\ns_mov_b32 s59, {bound}")
        if pt & 4: a("buffer_load_dword v36, v20, s[52:55], s26 offen sc1")
        if ot: a("buffer_load_ushort v37, v7, s[48:51], s62 offen" + (" sc1" if ot & 2 else ""))
        a("v_mov_b32 v2, s14\nv_mov_b32 v3, 0\ns_waitcnt vmcnt(0)\nv_lshlrev_b32 v9, 16, v9\ns_setprio 3\ns_barrier\nds_read_b32 v13, v8\ns_waitcnt lgkmcnt(0)")
        if h3 == 2: a("s_mov_b32 exec_hi, 0")
        if gate:
            a(f"v_mov_b32 v16, {L_LVL}\ns_mov_b32 s58, {bound*8}")
            a.label("L_gate")
            a("ds_read_b32 v17, v16\ns_sub_u32 s58, s58, 1\ns_cmp_eq_u32 s58, 0\ns_cbranch_scc1 L_gated\ns_waitcnt lgkmcnt(0)\nv_cmp_eq_u32 vcc, -1, v17\ns_cbranch_vccnz L_gate")
            a.label("L_gated")
            if fdelay: a(f"s_sleep {fdelay}")
        sets = [36, 37, 38, 39][:nf]
        def iss(G): a(f"buffer_load_dword v{G}, v20, s[52:55], s26 offen sc1")
        for k in range(nf - 1):
            iss(sets[k]); a(f"s_sleep {spf}")
        a.label("L_fpoll")
        for k in range(nf):
            if fsleep: a(f"s_sleep {fsleep}")
            iss(sets[(k + nf - 1) % nf])
            if k == 0: a("s_sub_u32 s59, s59, 1")
            a(f"s_waitcnt vmcnt({nf-1})")
            a(f"v_xor_b32 v34, v33, v{sets[k]}\nv_lshlrev_b32 v35, 24, v34\nv_cmp_ne_u32 vcc, 0, v35")
            for m in ["quad_perm:[1,0,3,2]", "quad_perm:[2,3,0,1]", "row_half_mirror"]:
                a(f"v_add_f32 v34, v34, v34 {m} {DPP}")
            a("v_cvt_pk_bf16_f32 v34, v34, v34\nv_lshlrev_b32 v34, 16, v34\nv_add_f32 v34, v9, v34")
            a("v_cvt_pk_bf16_f32 v34, v34, v34\nv_lshlrev_b32 v34, 16, v34\nv_add_f32 v34, v13, v34")
            a("v_cvt_pk_bf16_f32 v34, v34, v34")
            if k < nf - 1: a("s_cbranch_vccz L_fdone !nf")
            else: a("s_cmp_eq_u32 s59, 0\ns_cbranch_scc1 L_fdone !nf\ns_cbranch_vccnz L_fpoll !nf")
        a.raw("L_fdone:")
        if not pbs:
            a("s_mov_b32 exec_lo, 0x01010101\n" + ("s_mov_b32 exec_hi, 0x01010101\n" if h3 == 1 else "") + "buffer_store_short v34, v7, s[48:51], s62 offen" + (" sc1" if outsc else ""))
        if probe == 104:
            a(f"s_memrealtime s[42:43]\nv_mov_b32 v16, {L_PRG}\nds_read_b32 v17, v16\ns_waitcnt lgkmcnt(0)\nv_readfirstlane_b32 s13, v17\ns_sub_u32 s72, s42, s13")
            a(f"s_sub_u32 s72, s72, {pnom}\ns_mul_i32 s72, s72, {pk}\ns_add_u32 s72, s72, 3000\ns_min_i32 s72, s72, 20000\ns_mov_b32 s74, 100000")
            a.label("L_probe")
            a("s_memrealtime s[42:43]\ns_sub_u32 s74, s74, 1\ns_cmp_eq_u32 s74, 0\ns_cbranch_scc1 L_probed\ns_waitcnt lgkmcnt(0)\ns_sub_u32 s42, s42, s13\ns_cmp_lt_i32 s42, s72\ns_cbranch_scc1 L_probe")
            a.label("L_probed")
        if pbs:
            a("s_mov_b32 exec_lo, 0x01010101\n" + ("s_mov_b32 exec_hi, 0x01010101\n" if h3 == 1 else "") + "buffer_store_short v34, v7, s[48:51], s62 offen" + (" sc1" if outsc else ""))
        if dbgt:
            a(f"s_memrealtime s[42:43]\nv_mov_b32 v16, {L_PRG}\nds_read_b32 v17, v16\ns_waitcnt lgkmcnt(0)\nv_sub_u32 v17, s42, v17")
            srd(44, 38, 256)
            a("s_sleep 32\ns_mov_b64 exec, 1\nbuffer_atomic_add v17, v3, s[44:47], 0 offen offset:28 sc1\nbuffer_atomic_smax v17, v3, s[44:47], 0 offen offset:60 sc1")
        if stamps:
            stamp(0); a("s_sleep 32")
            a(f"s_lshl_b32 s68, s2, 7\ns_add_u32 s68, s68, {WS_DBG}\ns_mov_b64 exec, 1\nv_mov_b32 v4, s70\nbuffer_store_dword v4, v3, s[52:55], s68 offen offset:40")
        if nf > 1 and not epo: a("s_waitcnt vmcnt(0)")
        a("s_cmp_lg_u32 s2, 0\ns_cbranch_scc1 L_end !nf")
        a("s_mov_b64 exec, 1\nbuffer_store_dword v2, v3, s[52:55], 0 offen" + (" sc1" if outsc else ""))
    a.label("L_end")
    a("s_endpgm")
    if ps:
        a.label("L_pf")
        a(f"s_sub_u32 s8, s5, {ps0}\ns_cmp_ge_u32 s8, {ps}\ns_cbranch_scc1 L_end")
        prefetch_code("s", NPF)
        a("s_endpgm")
    a.raw(".p2align 8"); a.raw("L_code_end:")
    a.raw('.section .rodata,"a"'); a.raw(".p2align 6"); a.raw(f".amdhsa_kernel {NAME}_kernel")
    for l in [".amdhsa_next_free_vgpr 256", ".amdhsa_next_free_sgpr 102", ".amdhsa_accum_offset 256", ".amdhsa_group_segment_fixed_size 0",
              ".amdhsa_kernarg_size 104", ".amdhsa_user_sgpr_count 2", ".amdhsa_user_sgpr_kernarg_segment_ptr 1", ".amdhsa_system_sgpr_workgroup_id_x 1"]:
        a.raw("  " + l)
    a.raw(".end_amdhsa_kernel")
    return a.text()

if __name__ == "__main__":
    for arg in sys.argv[1:]:
        path, _, kv = arg.partition("=")
        d = {}
        for p in kv.split(","):
            if p:
                k, v = p.split(":"); d[k] = int(v, 0)
        open(path, "w").write(gen(**d))
```
